```python
import torch

def _softmax(x, axis=-1):
    return torch.softmax(x, dim=axis)
def _gelu(x):
    return torch.nn.functional.gelu(x, approximate="tanh")
def _silu(x):
    return torch.nn.functional.silu(x)
def _sigmoid(x):
    return torch.sigmoid(x)
def _layernorm(x, axis=-1, eps=1e-5):
    m = x.mean(dim=axis, keepdim=True)
    v = x.var(dim=axis, keepdim=True, unbiased=False)
    return (x - m) / torch.sqrt(v + eps)
def _scatter_add(tgt, idx, src, axis=0):
    return tgt.clone().index_add_(axis, idx, src)
def _segment_sum(src, seg, n):
    out = torch.zeros((n,) + src.shape[1:], dtype=src.dtype)
    return out.index_add_(0, seg, src)
def _pad(x, pw):
    flat = tuple(v for pair in reversed(pw) for v in pair)
    return torch.nn.functional.pad(x, flat)

kernel_name = 'recurrent_scan__gqa_block_cached__mixer_channel_mlp__decode'

def setup_inputs():

    _w = (lambda a: (lambda t: t.to(torch.bfloat16) if t.is_floating_point() else t)(torch.as_tensor(a)))
    def _A_setup():
        B, Sq, D = 2, 1, 512
        Hq, Hkv, Sk, Dh = 32, 8, 8192, 128
        assert Hq % Hkv == 0, (Hq, Hkv)
        return {
            "x": _w((lambda *s: torch.randn(*s, dtype=torch.bfloat16) * 0.1)(B, Sq, D)),
            "k_cache": _w((lambda *s: torch.randn(*s, dtype=torch.bfloat16) * 0.8)(B, Hkv, Sk, Dh)),
            "v_cache": _w((lambda *s: torch.randn(*s, dtype=torch.bfloat16) * 3.2)(B, Hkv, Sk, Dh)),
            "wq": _w((lambda *s: torch.randn(*s, dtype=torch.bfloat16) * 0.8)(D, Hq * Dh) * (D ** -0.5)),
            "wo": _w((lambda *s: torch.randn(*s, dtype=torch.bfloat16) * 3.2)(Hq * Dh, D) * ((Hq * Dh) ** -0.5)),
        }
    _A_in = _A_setup()

    def _B_setup():
        B, S, D, F = 2, 1, 512, 1792
        return {
            "x": _w((lambda *s: torch.randn(*s, dtype=torch.bfloat16) * 0.1)(B, S, D)),
            "w1": _w((lambda *s: torch.randn(*s, dtype=torch.bfloat16) * 3.2)(D, F) * (D ** -0.5)),
            "b1": _w((lambda *s: torch.randn(*s, dtype=torch.bfloat16) * 3.2)(F)),
            "w2": _w((lambda *s: torch.randn(*s, dtype=torch.bfloat16) * 3.2)(F, D) * (F ** -0.5)),
            "b2": _w((lambda *s: torch.randn(*s, dtype=torch.bfloat16) * 3.2)(D)),
        }
    _B_in = _B_setup()

    return {
        "A_x": _A_in["x"],
        "A_k_cache": _A_in["k_cache"],
        "A_v_cache": _A_in["v_cache"],
        "A_wq": _A_in["wq"],
        "A_wo": _A_in["wo"],
        "B_x": _B_in["x"],
        "B_w1": _B_in["w1"],
        "B_b1": _B_in["b1"],
        "B_w2": _B_in["w2"],
        "B_b2": _B_in["b2"],
    }

def reference(A_x, A_k_cache, A_v_cache, A_wq, A_wo, B_x, B_w1, B_b1, B_w2, B_b2):
    def _A_ref(x, k_cache, v_cache, wq, wo):
        B, Sq, D = x.shape
        Hq, Dh = 32, 128
        Hkv = k_cache.shape[1]
        rep = Hq // Hkv
        q = (lambda x, *d: x.permute(*d))((x @ wq).reshape(B, Sq, Hq, Dh), 0, 2, 1, 3)
        k = (lambda x, n, axis: torch.repeat_interleave(x, n, dim=axis))(k_cache, rep, axis=1)
        v = (lambda x, n, axis: torch.repeat_interleave(x, n, dim=axis))(v_cache, rep, axis=1)
        scores = torch.einsum("bhqd,bhkd->bhqk", q, k) * (Dh ** -0.5)
        p = _softmax(scores, axis=-1)
        o = torch.einsum("bhqk,bhkd->bhqd", p, v)
        return (lambda x, *d: x.permute(*d))(o, 0, 2, 1, 3).reshape(B, Sq, Hq * Dh) @ wo

    def _B_ref(x, w1, b1, w2, b2):
        y = _layernorm(x, axis=-1)
        h = _gelu(torch.einsum("bsd,df->bsf", y, w1) + b1)
        return torch.einsum("bsf,fd->bsd", h, w2) + b2

    x = A_x
    xn = _layernorm(x, axis=-1)
    s = _A_ref(xn, A_k_cache, A_v_cache, A_wq, A_wo)
    g = _silu(_B_ref(xn, B_w1, B_b1, B_w2, B_b2))
    return x + s * g
```

```python
import re

TRANS = ("v_exp_f32", "v_log_f32", "v_rcp_f32", "v_rsq_f32", "v_sqrt_f32", "v_sin_f32", "v_cos_f32")

def regs_of(tok):
    tok = tok.strip()
    neg = tok.lstrip("-")
    m = re.fullmatch(r"abs\((.*)\)", neg)
    if m: neg = m.group(1)
    m = re.fullmatch(r"\|(.*)\|", neg)
    if m: neg = m.group(1)
    m = re.fullmatch(r"([vs])(\d+)", neg)
    if m: return {(m.group(1), int(m.group(2)))}
    m = re.fullmatch(r"([vs])\[(\d+):(\d+)\]", neg)
    if m: return {(m.group(1), i) for i in range(int(m.group(2)), int(m.group(3)) + 1)}
    if neg == "vcc": return {("s", 106), ("s", 107)}
    if neg == "vcc_lo": return {("s", 106)}
    if neg == "vcc_hi": return {("s", 107)}
    if neg == "exec": return {("s", 126), ("s", 127)}
    if neg == "m0": return {("s", 124)}
    return set()

class Ins:
    def __init__(self, text):
        self.text = text
        body = text.split(";")[0].strip()
        parts = body.split(None, 1)
        self.op = parts[0]
        rest = parts[1] if len(parts) > 1 else ""
        ops = []; cur = ""; depth = 0
        for ch in rest:
            if ch in "[(": depth += 1
            if ch in "])": depth -= 1
            if ch == "," and depth == 0: ops.append(cur); cur = ""
            else: cur += ch
        if cur.strip(): ops.append(cur)
        self.mods = ""
        if ops:
            last = ops[-1].strip().split(None, 1)
            ops[-1] = last[0]
            self.mods = last[1] if len(last) > 1 else ""
        self.ops = [o.strip() for o in ops]
        op = self.op
        self.mfma = op.startswith("v_mfma")
        self.valu = op.startswith("v_") and not self.mfma
        self.vmem = op.startswith(("buffer_", "global_"))
        self.ds = op.startswith("ds_")
        self.salu = op.startswith("s_")
        self.dpp = "_dpp" in op
        self.perml = op.startswith("v_permlane")
        self.rdlane = op.startswith(("v_readlane", "v_readfirstlane"))
        self.trans = op.replace("_e32", "").replace("_e64", "") in TRANS
        R = [regs_of(o) for o in self.ops]
        d = set(); u = set()
        self.srcC = set(); self.srcAB = set(); self.stdata = set()
        if self.mfma:
            d = R[0]; self.srcAB = R[1] | R[2]; self.srcC = R[3]; u = R[1] | R[2] | R[3]
        elif self.valu:
            if self.perml and "swap" in op:
                d = R[0] | R[1]; u = R[0] | R[1]
            elif op.startswith("v_cmp"):
                d = R[0]; u = set().union(*R[1:])
            elif op.startswith(("v_add_co", "v_sub_co", "v_addc_co", "v_subb_co")):
                d = R[0] | R[1]; u = set().union(*R[2:])
            else:
                d = R[0]; u = set().union(*R[1:]) if len(R) > 1 else set()
                if op.startswith(("v_fmac", "v_dot2c", "v_pk_fmac")) or self.dpp: u |= R[0]
        elif self.vmem:
            if "load" in op and "lds" not in self.mods.split():
                d = R[0]; u = set().union(*R[1:])
            elif op in ("buffer_inv", "buffer_wbl2"):
                pass
            else:
                u = set().union(*R)
                if "store" in op and ("x4" in op or "x3" in op):
                    self.stdata = R[0] if op.startswith("buffer") else R[1]
                if "atomic" in op and "sc0" in self.mods.split():
                    d = R[0]
        elif self.ds:
            if op.startswith(("ds_read", "ds_bpermute", "ds_permute", "ds_swizzle")) or "_rtn" in op:
                d = R[0]; u = set().union(*R[1:])
            else:
                u = set().union(*R)
        elif self.salu:
            if op.startswith(("s_cmp", "s_cbranch", "s_branch", "s_waitcnt", "s_nop", "s_barrier", "s_sleep", "s_setprio", "s_endpgm", "s_bitcmp", "s_setpc")):
                u = set().union(*R) if R else set()
            else:
                d = R[0] if R else set(); u = set().union(*R[1:]) if len(R) > 1 else set()
        self.d = d; self.u = u
        self.states = 1
        if op == "s_nop": self.states = int(self.ops[0], 0) + 1

def need(p, c):
    n = 0
    pv = {r for r in p.d if r[0] == "v"}; ps = {r for r in p.d if r[0] == "s"}
    if p.valu:
        if c.mfma and pv & c.u: n = max(n, 2)
        if c.valu and c.dpp and pv & c.u: n = max(n, 2)
        if c.perml and pv & c.u: n = max(n, 2)
        if c.rdlane and pv & c.u: n = max(n, 1)
        if p.trans and c.valu and pv & c.u: n = max(n, 1)
        if ps:
            if c.valu and ps & c.u: n = max(n, 4 if c.rdlane else 2)
            if c.valu and c.op.startswith("v_cndmask") and ("s", 106) in ps: n = max(n, 2)
            if c.vmem and ps & c.u: n = max(n, 5)
    if p.mfma:
        if c.mfma:
            if pv & c.srcAB: n = max(n, 8)
            if pv & c.srcC and c.srcC != pv: n = max(n, 6)
            if pv & c.d and c.srcC != pv: n = max(n, 8)
        elif (c.valu or c.vmem or c.ds) and pv & (c.u | c.d): n = max(n, 8)
        if c.valu and p.srcC & c.d: n = max(n, 3)
    if p.stdata and (c.valu or c.mfma) and p.stdata & c.d: n = max(n, 2)
    if p.stdata and (c.vmem or c.ds) and p.stdata & c.d: n = max(n, 1)
    return n

class Asm:
    def __init__(self):
        self.lines = []
    def __call__(self, text):
        for t in text.split("\n"):
            t = t.strip()
            if not t: continue
            if t.endswith(":") or t.startswith((".", ";")): self.lines.append(t)
            else: self.lines.append(Ins(t))
    def label(self, l): self.lines.append(l + ":")
    def finish(self):
        L = self.lines
        changed = True
        while changed:
            changed = False
            labels = {x[:-1]: i for i, x in enumerate(L) if isinstance(x, str) and x.endswith(":")}
            br = {}
            for i, x in enumerate(L):
                if isinstance(x, Ins) and x.op.startswith(("s_cbranch", "s_branch")):
                    br.setdefault(x.ops[0], []).append(i)
            def walk(i, dist, c, seen):
                worst = 0
                j = i - 1
                while j >= 0 and dist < 9:
                    x = L[j]
                    if isinstance(x, str):
                        if x.endswith(":"):
                            for b in br.get(x[:-1], []):
                                if (b, dist) not in seen:
                                    seen.add((b, dist))
                                    worst = max(worst, walk(b + 1, dist, c, seen))
                        j -= 1; continue
                    if x.op in ("s_branch", "s_endpgm", "s_setpc_b64") and j != i - 1 or (x.op in ("s_endpgm",)):
                        break
                    if x.op == "s_branch" and j == i - 1 and not seen_from_branch(seen, j):
                        break
                    worst = max(worst, need(x, c) - dist)
                    dist += x.states
                    j -= 1
                return worst
            def seen_from_branch(seen, j): return any(b == j for b, _ in seen)
            for i, x in enumerate(L):
                if isinstance(x, Ins):
                    w = walk(i, 0, x, set())
                    if w > 0:
                        L.insert(i, Ins(f"s_nop {w-1}"))
                        changed = True
                        break
        out = []
        for x in L:
            out.append(x if isinstance(x, str) else "    " + x.text)
        return "\n".join(out) + "\n"
```

```python
import sys
from asmlib import Asm
NAME = "recurrent_scan__gqa_block_cached__mixer_channel_mlp__decode"

WS_EPOCH = 0
WS_QX = 0x10000
WS_HX = 0x30000
WS_MP = 0x50000
WS_ML = 0x70000
WS_OP = 0x80000
WS_SP = 0x100000
WS_STAMP = 0x800000
WS_SIZE = 0x10000000
L_QF = 0
L_ACC = 1024
L_MLT = 3072
L_FLAG = 3584
L_CNT = 3588
L_XS0 = 5120
L_XS1 = 7168
L_SCR = 9216
LDS_BYTES = 9216 + 16 * 256

DPPF = "row_mask:0xf bank_mask:0xf"
TIMEOUT = 200000

def gen(debug=False, opts=None):
    o = dict(nt=True, sleep=1)
    o.update(opts or {})
    NT = " nt" if o["nt"] else ""
    A = Asm()
    uid = [0]
    def lab(s):
        uid[0] += 1
        return f"L_{s}_{uid[0]}"
    def stamp(k):
        if debug: A(f"s_memrealtime s[{80+2*k}:{81+2*k}]")
    def srd(d, p, size):
        A(f"s_mov_b32 s{d}, s{p}\ns_mov_b32 s{d+1}, s{p+1}\ns_mov_b32 s{d+2}, {size:#x}\ns_mov_b32 s{d+3}, 0x00020000")
    def tags():
        A("s_add_u32 s65, s64, 0x01010101\ns_lshr_b32 s66, s65, 8\ns_lshr_b32 s67, s65, 16\ns_lshr_b32 s68, s65, 24")
    VFF = 5
    def tag4(dst, srcs):
        for j in range(4): A(f"v_bfi_b32 v{dst+j}, v{VFF}, s{65+j}, v{srcs[j]}")
    def check(acc, base, n):
        for i in range(n):
            if i == 0: A(f"v_xor_b32 v{acc}, s{65 + i % 4}, v{base+i}")
            else: A(f"v_bitop3_b32 v{acc}, v{base+i}, s{65 + i % 4}, v{acc} bitop3:0xbe")
        A(f"v_and_b32 v{acc}, v{VFF}, v{acc}")
        A(f"v_cmp_ne_u32 vcc, 0, v{acc}")
    def poll(loads, acc, base, n, pre="", post=""):
        l0 = lab("poll"); l1 = lab("pok")
        A(f"s_mov_b32 s75, {TIMEOUT}")
        A.label(l0)
        A(pre)
        loads()
        A("s_waitcnt vmcnt(0)")
        check(acc, base, n)
        A(post)
        A(f"s_cbranch_vccz {l1}")
        A(f"s_sub_u32 s75, s75, 1\ns_cmp_eq_u32 s75, 0\ns_cbranch_scc1 {l1}")
        if o["sleep"]: A(f"s_sleep {o['sleep']}")
        A(f"s_branch {l0}")
        A.label(l1)
    def rowred(op, regs):
        for sh in (8, 4, 2, 1):
            for r in regs: A(f"{op}_dpp v{r}, v{r}, v{r} row_ror:{sh} {DPPF}")
    def xred(op, regs, tmps, which=(16, 32)):
        for w in which:
            for r, t in zip(regs, tmps): A(f"v_mov_b32 v{t}, v{r}")
            for r, t in zip(regs, tmps): A(f"v_permlane{w}_swap_b32 v{r}, v{t}")
            for r, t in zip(regs, tmps): A(f"{op} v{r}, v{r}, v{t}")
    def unpack(dst, src, n):
        for i in range(n):
            A(f"v_lshlrev_b32 v{dst+2*i}, 16, v{src+i}")
            A(f"v_and_b32 v{dst+2*i+1}, s77, v{src+i}")
    def layernorm(xp, u, t):
        unpack(u, xp, 8)
        for b in range(2):
            A(f"v_add_f32 v{t+b}, v{u+8*b}, v{u+8*b+1}")
            for i in range(2, 8): A(f"v_add_f32 v{t+b}, v{t+b}, v{u+8*b+i}")
        rowred("v_add_f32", [t, t+1])
        xred("v_add_f32", [t, t+1], [t+2, t+3])
        A(f"v_mul_f32 v{t}, 0x3b000000, v{t}\nv_mul_f32 v{t+1}, 0x3b000000, v{t+1}")
        for b in range(2):
            for i in range(8):
                A(f"v_sub_f32 v{t+4}, v{u+8*b+i}, v{t+b}")
                if i == 0: A(f"v_mul_f32 v{t+2+b}, v{t+4}, v{t+4}")
                else: A(f"v_fmac_f32 v{t+2+b}, v{t+4}, v{t+4}")
        rowred("v_add_f32", [t+2, t+3])
        xred("v_add_f32", [t+2, t+3], [t+4, t+5])
        A(f"v_mul_f32 v{t+2}, 0x3b000000, v{t+2}\nv_mul_f32 v{t+3}, 0x3b000000, v{t+3}")
        A(f"v_cvt_pk_bf16_f32 v{t+4}, v{t}, v{t+1}")
        A(f"v_cvt_pk_bf16_f32 v{t+5}, v{t+2}, v{t+3}")
        unpack(t, t+4, 2)
        A(f"v_add_f32 v{t+2}, 0x3727c5ac, v{t+2}\nv_add_f32 v{t+3}, 0x3727c5ac, v{t+3}")
        A(f"v_cvt_pk_bf16_f32 v{t+5}, v{t+2}, v{t+3}")
        unpack(t+2, t+5, 1)
        A(f"v_sqrt_f32 v{t+2}, v{t+2}\nv_sqrt_f32 v{t+3}, v{t+3}")
        A(f"v_cvt_pk_bf16_f32 v{t+5}, v{t+2}, v{t+3}")
        unpack(t+2, t+5, 1)
        A(f"v_rcp_f32 v{t+2}, v{t+2}\nv_rcp_f32 v{t+3}, v{t+3}")
        for b in range(2):
            for i in range(8): A(f"v_sub_f32 v{u+8*b+i}, v{u+8*b+i}, v{t+b}")
        for i in range(8): A(f"v_cvt_pk_bf16_f32 v{xp+i}, v{u+2*i}, v{u+2*i+1}")
        unpack(u, xp, 8)
        for b in range(2):
            for i in range(8): A(f"v_mul_f32 v{u+8*b+i}, v{u+8*b+i}, v{t+2+b}")
        for i in range(8): A(f"v_cvt_pk_bf16_f32 v{xp+i}, v{u+2*i}, v{u+2*i+1}")
    def tile_loads(dst, nks, voff, srdr, sbase, rowoff):
        for ks in range(nks):
            for i in range(8):
                off = rowoff(ks, i)
                r = dst + (ks * 8 + i) * 2
                hi, lo = off & ~0xfff, off & 0xfff
                if hi == 0: so = f"s{sbase}"
                else:
                    A(f"s_add_u32 s73, s{sbase}, {hi:#x}"); so = "s73"
                A(f"buffer_load_dwordx2 v[{r}:{r+1}], v{voff}, s[{srdr}:{srdr+3}], {so} offen offset:{lo}{NT}")
    def tile_perm(src, ks, T):
        for j in range(2):
            for p in range(4):
                a = src + (ks * 8 + 2 * p) * 2 + j; b = src + (ks * 8 + 2 * p + 1) * 2 + j
                A(f"v_perm_b32 v{T+4*(2*j)+p}, v{b}, v{a}, s69")
                A(f"v_perm_b32 v{T+4*(2*j+1)+p}, v{b}, v{a}, s70")
    def tile_mfma(D, Af, T, first):
        for d in range(4):
            c = "0" if first else f"v[{D+4*d}:{D+4*d+3}]"
            A(f"v_mfma_f32_16x16x32_bf16 v[{D+4*d}:{D+4*d+3}], v[{Af}:{Af+3}], v[{T+4*d}:{T+4*d+3}], {c}")
    def publish512(D, tmp, soff):
        tag4(tmp, [D, D+4, D+8, D+12])
        A("s_mov_b32 exec_hi, 0")
        A(f"buffer_store_dwordx4 v[{tmp}:{tmp+3}], v3, s[44:47], s{soff} offen sc1")
        A("s_mov_b32 exec_hi, -1")
    def bf16r(regs):
        for r in regs: A(f"v_cvt_pk_bf16_f32 v{r}, v{r}, v{r}")
        for r in regs: A(f"v_and_b32 v{r}, s77, v{r}")

    A(f"; @launch grid=(256,1,1) block=(1024,1,1) lds={LDS_BYTES}")
    A('.amdgcn_target "amdgcn-amd-amdhsa--gfx950"\n.text')
    A(f".globl {NAME}_kernel\n.p2align 8\n.type {NAME}_kernel,@function\n{NAME}_kernel:")
    A("s_cmp_ge_u32 s2, 256\ns_cbranch_scc1 L_end")
    A("s_load_dwordx16 s[16:31], s[0:1], 0\ns_load_dwordx8 s[32:39], s[0:1], 64\ns_load_dwordx2 s[40:41], s[0:1], 96")
    if debug:
        for k in range(10): A(f"s_mov_b64 s[{80+2*k}:{81+2*k}], 0")
    stamp(0)
    A("v_lshlrev_b32 v6, 2, v0\nv_mov_b32 v7, 0\nds_write_b32 v6, v7 offset:1024")
    A("v_lshrrev_b32 v4, 6, v0\nv_and_b32 v1, 63, v0\nv_readfirstlane_b32 s3, v4")
    A("s_and_b32 s4, s2, 7\ns_lshr_b32 s5, s2, 3\ns_lshr_b32 s6, s5, 4\ns_and_b32 s7, s5, 15")
    A("s_lshl_b32 s72, s6, 3\ns_add_u32 s72, s72, s4\ns_lshl_b32 s72, s72, 21\ns_lshl_b32 s73, s7, 17\ns_add_u32 s72, s72, s73")
    A("s_lshl_b32 s73, s3, 13\ns_add_u32 s72, s72, s73\ns_add_u32 s74, s72, 4096")
    A("v_lshlrev_b32 v3, 4, v1")
    A("v_bfe_u32 v2, v1, 2, 2\nv_lshlrev_b32 v2, 8, v2\nv_lshrrev_b32 v4, 4, v1\nv_lshl_add_u32 v2, v4, 6, v2")
    A("v_and_b32 v6, 3, v1\nv_lshl_add_u32 v2, v6, 4, v2")
    A("v_and_b32 v6, 15, v1")
    A(f"v_mov_b32 v{VFF}, 0xff")
    A("s_mov_b32 s69, 0x05040100\ns_mov_b32 s70, 0x07060302\ns_mov_b32 s71, 0x3e0293ee\ns_mov_b32 s77, 0xffff0000")
    A("s_lshl_b32 s78, s4, 5\ns_add_u32 s78, s78, s5")
    A("s_waitcnt lgkmcnt(0)")
    A("s_load_dword s64, s[40:41], 0")
    srd(8, 18, 0x2000000); srd(12, 20, 0x2000000); srd(44, 40, WS_SIZE)
    A("s_mov_b32 s76, 0")
    A("s_cmp_eq_u32 s3, 0\ns_cbranch_scc1 L_w0")
    A("s_cmp_lg_u32 s3, 1\ns_cbranch_scc1 L_stream")
    A("s_cmp_lt_u32 s2, 224\ns_cbranch_scc1 L_w1")
    A("s_branch L_stream")

    A.label("L_w0")
    A("s_setprio 3")
    srd(48, 16, 2048); srd(52, 22, 0x400000)
    A("buffer_load_dwordx4 v[8:11], v3, s[48:51], 0 offen\nbuffer_load_dwordx4 v[12:15], v3, s[48:51], 0 offen offset:1024")
    A("v_lshlrev_b32 v7, 16, v4\nv_lshl_add_u32 v7, v6, 3, v7")
    A("s_lshr_b32 s79, s5, 3\ns_lshl_b32 s42, s79, 20\ns_and_b32 s73, s5, 7\ns_lshl_b32 s73, s73, 7\ns_add_u32 s42, s42, s73")
    A("s_lshl_b32 s73, s4, 10\ns_add_u32 s42, s42, s73")
    tile_loads(16, 4, 7, 52, 42, lambda ks, i: (32 * ks + i) * 8192)
    A("s_barrier")
    A("s_waitcnt vmcnt(32)")
    stamp(1)
    layernorm(8, 96, 112)
    A(f"ds_write_b128 v3, v[8:11] offset:{L_XS0}\nds_write_b128 v3, v[12:15] offset:{L_XS0+1024}")
    A("v_bfe_u32 v7, v1, 2, 1\nv_lshlrev_b32 v7, 10, v7\nv_lshl_add_u32 v7, v4, 4, v7\ns_lshl_b32 s73, s79, 8\nv_add_u32 v7, s73, v7")
    for ks in range(4): A(f"ds_read_b128 v[{96+4*ks}:{99+4*ks}], v7 offset:{L_XS0+64*ks}")
    A("s_waitcnt lgkmcnt(0)")
    tags()
    for ks in range(4):
        A(f"s_waitcnt vmcnt({24-8*ks})")
        T = 80
        tile_perm(16, ks, T)
        tile_mfma(112, 96 + 4 * ks, T, ks == 0)
    A(f"s_lshl_b32 s42, s78, 9\ns_add_u32 s42, s42, {WS_QX:#x}")
    publish512(112, 8, 42)
    stamp(2)
    A("v_lshlrev_b32 v7, 9, v4\nv_lshl_add_u32 v7, v6, 4, v7")
    A(f"s_lshl_b32 s42, s4, 14\ns_lshl_b32 s73, s6, 8\ns_add_u32 s42, s42, s73\ns_add_u32 s42, s42, {WS_QX:#x}")
    def qloads():
        for kq in range(4):
            if kq: A(f"s_add_u32 s73, s42, {kq*4096}")
            so = "s73" if kq else "s42"
            for u in range(2):
                r = 16 + (kq * 2 + u) * 4
                A(f"buffer_load_dwordx4 v[{r}:{r+3}], v7, s[44:47], {so} offen offset:{u*2048} sc1")
    poll(qloads, 8, 16, 32)
    for u in range(2):
        for e in range(4):
            r = 16 + u * 4 + e
            A(f"v_add_f32 v{r}, v{r}, v{r+8}\nv_add_f32 v{r+16}, v{r+16}, v{r+24}")
    for r in range(16, 24): A(f"v_add_f32 v{r}, v{r}, v{r+16}")
    for i in range(4): A(f"v_cvt_pk_bf16_f32 v{8+i}, v{16+2*i}, v{17+2*i}")
    A("v_lshlrev_b32 v7, 3, v1")
    A(f"ds_write_b64 v7, v[8:9] offset:{L_QF}\nds_write_b64 v7, v[10:11] offset:{L_QF+512}")
    A(f"v_mov_b32 v7, {L_FLAG}\nv_mov_b32 v8, 1\nds_write_b32 v7, v8")
    stamp(3)
    A("s_mov_b32 s76, 1\ns_branch L_stream")

    A.label("L_w1")
    A("s_setprio 2")
    srd(48, 16, 2048); srd(52, 28, 512 * 3584); srd(56, 32, 1792 * 1024); srd(60, 30, 3584)
    A("buffer_load_dwordx4 v[8:11], v3, s[48:51], 0 offen\nbuffer_load_dwordx4 v[12:15], v3, s[48:51], 0 offen offset:1024")
    A("v_mul_u32_u24 v7, 0x7000, v4\nv_lshl_add_u32 v7, v6, 3, v7")
    A("s_mul_i32 s42, s4, 0x38000\ns_lshl_b32 s73, s5, 7\ns_add_u32 s42, s42, s73")
    tile_loads(16, 2, 7, 52, 42, lambda ks, i: (32 * ks + i) * 3584)
    A("v_lshrrev_b32 v125, 1, v4\nv_lshlrev_b32 v125, 2, v125\nv_lshl_add_u32 v125, v6, 3, v125")
    A("s_lshl_b32 s73, s5, 7")
    A("buffer_load_dword v124, v125, s[60:63], s73 offen")
    A("v_lshlrev_b32 v7, 13, v4\nv_lshl_add_u32 v7, v6, 3, v7")
    A("s_lshl_b32 s42, s5, 16\ns_lshl_b32 s73, s4, 7\ns_add_u32 s42, s42, s73")
    tile_loads(48, 2, 7, 56, 42, lambda ks, i: (32 * ks + i) * 1024)
    A("s_barrier")
    A("s_waitcnt vmcnt(33)")
    stamp(1)
    layernorm(8, 96, 112)
    layernorm(8, 96, 112)
    A(f"ds_write_b128 v3, v[8:11] offset:{L_XS1}\nds_write_b128 v3, v[12:15] offset:{L_XS1+1024}")
    A("v_bfe_u32 v7, v1, 2, 1\nv_lshlrev_b32 v7, 10, v7\nv_lshl_add_u32 v7, v4, 4, v7\ns_lshl_b32 s73, s4, 7\nv_add_u32 v7, s73, v7")
    for ks in range(2): A(f"ds_read_b128 v[{96+4*ks}:{99+4*ks}], v7 offset:{L_XS1+64*ks}")
    A("s_waitcnt lgkmcnt(0)")
    tags()
    for ks in range(2):
        A(f"s_waitcnt vmcnt({25-8*ks})")
        tile_perm(16, ks, 80)
        tile_mfma(104, 96 + 4 * ks, 80, ks == 0)
    A(f"s_lshl_b32 s42, s2, 9\ns_add_u32 s42, s42, {WS_HX:#x}")
    publish512(104, 8, 42)
    stamp(2)
    A(f"s_lshl_b32 s42, s5, 12\ns_add_u32 s42, s42, {WS_HX:#x}")
    def hloads():
        for t in range(4): A(f"buffer_load_dwordx4 v[{16+4*t}:{19+4*t}], v3, s[44:47], s42 offen offset:{t*1024} sc1")
    poll(hloads, 8, 16, 16)
    for e in range(4): A(f"v_add_f32 v{16+e}, v{16+e}, v{20+e}\nv_add_f32 v{24+e}, v{24+e}, v{28+e}")
    for e in range(4): A(f"v_add_f32 v{16+e}, v{16+e}, v{24+e}")
    A("v_permlane32_swap_b32 v16, v18\nv_permlane32_swap_b32 v17, v19\nv_add_f32 v16, v16, v18\nv_add_f32 v17, v17, v19")
    bf16r([16, 17])
    unpack(18, 124, 1)
    A("v_add_f32 v16, v16, v18\nv_add_f32 v17, v17, v19")
    bf16r([16, 17])
    A("s_mov_b32 s73, 0x3d372713")
    for r in (16, 17):
        A(f"v_mul_f32 v{r+2}, v{r}, v{r}\nv_fma_f32 v{r+2}, v{r+2}, s73, 1.0\nv_mul_f32 v{r+2}, v{r+2}, v{r}\nv_mul_f32 v{r+2}, 0xc0135761, v{r+2}")
    A("v_exp_f32 v18, v18\nv_exp_f32 v19, v19\nv_add_f32 v18, 1.0, v18\nv_add_f32 v19, 1.0, v19\nv_rcp_f32 v18, v18\nv_rcp_f32 v19, v19")
    A("v_mul_f32 v16, v16, v18\nv_mul_f32 v17, v17, v19\nv_cvt_pk_bf16_f32 v16, v16, v17")
    A("v_and_b32 v7, 1, v4\nv_lshl_add_u32 v7, v7, 7, v125")
    A(f"ds_write_b32 v7, v16 offset:{L_SCR+256}")
    A("v_bfe_u32 v7, v1, 2, 1\nv_lshlrev_b32 v7, 7, v7\nv_lshl_add_u32 v7, v4, 4, v7")
    for ks in range(2): A(f"ds_read_b128 v[{96+4*ks}:{99+4*ks}], v7 offset:{L_SCR+256+64*ks}")
    tile_perm(48, 0, 80)
    tile_perm(48, 1, 16)
    A("s_waitcnt lgkmcnt(0)")
    tile_mfma(104, 96, 80, True)
    tile_mfma(104, 100, 16, False)
    A(f"s_lshl_b32 s42, s4, 5\ns_add_u32 s42, s42, s5\ns_lshl_b32 s42, s42, 9\ns_add_u32 s42, s42, {WS_MP:#x}")
    publish512(104, 8, 42)
    stamp(3)
    A("s_mov_b32 s76, 1")

    A.label("L_stream")
    for t in range(8):
        so = "s72" if t < 4 else "s74"
        A(f"buffer_load_dwordx4 v[{16+4*t}:{19+4*t}], v2, s[8:11], {so} offen offset:{(t%4)*1024}{NT}")
        if t == 0:
            A("s_cmp_eq_u32 s76, 1\ns_cbranch_scc1 L_nobar\ns_barrier\nL_nobar:")
    for t in range(8):
        so = "s72" if t < 4 else "s74"
        A(f"buffer_load_dwordx4 v[{48+4*t}:{51+4*t}], v3, s[12:15], {so} offen offset:{(t%4)*1024}{NT}")
    A("s_setprio 0")
    stamp(4)
    A("s_add_u32 s73, s3, 4\ns_and_b32 s73, s73, 15\ns_cmp_lt_u32 s73, 6\ns_cselect_b32 s76, 1, 0")
    A(f"v_mov_b32 v7, {L_FLAG}")
    A("s_waitcnt vmcnt(8)")
    A(f"s_mov_b32 s75, {TIMEOUT*4}")
    A.label("L_qwait")
    A(f"ds_read_b32 v12, v7\nds_read_b128 v[8:11], v2 offset:{L_QF}\ns_waitcnt lgkmcnt(0)")
    A("v_readfirstlane_b32 s73, v12\ns_cmp_lg_u32 s73, 0\ns_cbranch_scc1 L_qok")
    A("s_sub_u32 s75, s75, 1\ns_cmp_eq_u32 s75, 0\ns_cbranch_scc1 L_qok\ns_sleep 2\ns_branch L_qwait")
    A.label("L_qok")
    stamp(5)
    tags()
    for t in range(8):
        A(f"v_mfma_f32_16x16x32_bf16 v[{80+4*t}:{83+4*t}], v[{16+4*t}:{19+4*t}], v[8:11], 0")
    for t in range(8): A(f"v_mov_b32_dpp v{112+t}, v{80+4*t} quad_perm:[0,0,0,0] {DPPF}")
    for s in range(1, 4):
        for t in range(8): A(f"v_add_f32_dpp v{112+t}, v{80+4*t+s}, v{112+t} quad_perm:[{s},{s},{s},{s}] {DPPF}")
    A("v_max3_f32 v120, v112, v113, v114\nv_max3_f32 v121, v115, v116, v117\nv_max3_f32 v120, v120, v118, v119\nv_max_f32 v120, v120, v121")
    xred("v_max_f32", [120], [121])
    A("v_mul_f32 v120, s71, v120")
    for t in range(8): A(f"v_fma_f32 v{112+t}, v{112+t}, s71, -v120")
    for t in range(8): A(f"v_exp_f32 v{112+t}, v{112+t}")
    for p in range(4): A(f"v_cvt_pk_bf16_f32 v{12+p}, v{112+2*p}, v{113+2*p}")
    A("v_add_f32 v121, v112, v113\nv_add_f32 v122, v114, v115\nv_add_f32 v123, v116, v117\nv_add_f32 v124, v118, v119")
    A("v_add_f32 v121, v121, v122\nv_add_f32 v123, v123, v124\nv_add_f32 v121, v121, v123")
    xred("v_add_f32", [121], [122])
    A("v_lshlrev_b32 v7, 1, v1\ns_lshl_b32 s73, s3, 5\nv_add_u32 v7, s73, v7")
    A("s_mov_b64 exec, 0x1111")
    A(f"ds_write_b64 v7, v[120:121] offset:{L_MLT}")
    A("s_mov_b64 exec, -1")
    A("s_cmp_eq_u32 s76, 1\ns_cbranch_scc1 L_barA")
    A.label("L_pv")
    for p in range(4):
        A(f"s_waitcnt vmcnt({6-2*p})")
        for j in range(4):
            a = 48 + 8 * p + j; b = a + 4
            A(f"v_perm_b32 v{80+8*j+p}, v{b}, v{a}, s69\nv_perm_b32 v{84+8*j+p}, v{b}, v{a}, s70")
    for d in range(8):
        A(f"v_mfma_f32_16x16x32_bf16 v[{16+4*d}:{19+4*d}], v[12:15], v[{80+4*d}:{83+4*d}], 0")
    stamp(6)
    A("s_cmp_eq_u32 s76, 1\ns_cbranch_scc1 L_after")
    A("s_and_b32 s73, s3, 14\ns_cmp_eq_u32 s73, 2\ns_cbranch_scc1 L_wo_pre")
    A("s_cmp_lg_u32 s3, 4\ns_cbranch_scc1 L_barA\ns_cmp_ge_u32 s2, 64\ns_cbranch_scc1 L_barA")
    srd(48, 16, 2048); srd(52, 34, 1024)
    A("s_lshr_b32 s79, s2, 4\ns_bfe_u32 s42, s2, 0x10003")
    A("v_and_b32 v7, 3, v1\nv_lshl_add_u32 v126, v7, 2, v4\nv_lshlrev_b32 v126, 1, v126")
    A("s_lshl_b32 s43, s4, 7\ns_lshl_b32 s73, s79, 5\ns_add_u32 s43, s43, s73")
    A("buffer_load_ushort v124, v126, s[52:55], s43 offen")
    A("s_lshl_b32 s73, s42, 10\ns_add_u32 s43, s43, s73")
    A("buffer_load_ushort v125, v126, s[48:51], s43 offen")
    A("v_lshrrev_b32 v127, 2, v1\nv_lshlrev_b32 v127, 9, v127\nv_lshl_add_u32 v127, v7, 4, v127")
    A("s_lshl_b32 s42, s42, 8\ns_lshl_b32 s73, s79, 6\ns_add_u32 s42, s42, s73")
    A(f"s_lshl_b32 s73, s4, 14\ns_add_u32 s79, s42, s73\ns_add_u32 s79, s79, {WS_MP:#x}")
    for j in range(4): A(f"v_mov_b32 v{52+j}, s{65+j}")
    for j in range(4): A(f"v_and_b32 v{52+j}, v{VFF}, v{52+j}")
    def mloads():
        A("buffer_load_dwordx4 v[48:51], v127, s[44:47], s79 offen sc1")
        A("s_add_u32 s73, s79, 8192\ns_mov_b32 exec_hi, 0xffff")
        A("buffer_load_dwordx4 v[52:55], v127, s[44:47], s73 offen sc1")
        A("s_mov_b32 exec_hi, -1")
    poll(mloads, 56, 48, 8)
    def finred(a):
        A(f"v_permlane32_swap_b32 v{a}, v{a+2}\nv_permlane32_swap_b32 v{a+1}, v{a+3}\nv_add_f32 v{a}, v{a}, v{a+2}\nv_add_f32 v{a+1}, v{a+1}, v{a+3}")
        A(f"v_permlane16_swap_b32 v{a}, v{a+1}\nv_add_f32 v{a}, v{a}, v{a+1}")
        A(f"v_add_f32_dpp v{a}, v{a}, v{a} row_ror:8 {DPPF}\nv_add_f32_dpp v{a}, v{a}, v{a} row_ror:4 {DPPF}")
    for e in range(4): A(f"v_add_f32 v{48+e}, v{48+e}, v{52+e}")
    finred(48)
    bf16r([48])
    A("v_lshlrev_b32 v124, 16, v124\nv_lshlrev_b32 v125, 16, v125\nv_add_f32 v48, v48, v124")
    bf16r([48])
    A("v_mul_f32 v49, 0xbfb8aa3b, v48\nv_exp_f32 v49, v49\nv_add_f32 v49, 1.0, v49\nv_rcp_f32 v49, v49\nv_mul_f32 v124, v48, v49")
    bf16r([124])
    A(f"s_lshl_b32 s73, s4, 15\ns_add_u32 s79, s42, s73\ns_add_u32 s79, s79, {WS_SP:#x}")
    A("s_branch L_barA")
    A.label("L_wo_pre")
    srd(52, 24, 0x400000)
    A("v_lshlrev_b32 v7, 14, v4\nv_lshl_add_u32 v7, v6, 3, v7")
    A("s_lshr_b32 s79, s5, 3\ns_and_b32 s43, s3, 1")
    A("s_lshl_b32 s42, s4, 19\ns_lshl_b32 s73, s79, 17\ns_add_u32 s42, s42, s73\ns_lshl_b32 s73, s43, 12\ns_add_u32 s42, s42, s73")
    A("s_and_b32 s73, s5, 7\ns_lshl_b32 s73, s73, 7\ns_add_u32 s42, s42, s73")
    tile_loads(48, 2, 7, 52, 42, lambda ks, i: (64 * ks + 8 * (i >> 2) + (i & 3)) * 1024)
    A("s_waitcnt vmcnt(0)")
    tile_perm(48, 0, 80)
    tile_perm(48, 1, 96)
    A.label("L_barA")
    A("s_waitcnt lgkmcnt(0)\ns_barrier")
    A("v_lshlrev_b32 v7, 5, v6\nv_lshl_add_u32 v7, v4, 3, v7")
    A(f"ds_read_b64 v[120:121], v7 offset:{L_MLT}")
    A("v_lshlrev_b32 v7, 3, v4\ns_lshl_b32 s73, s3, 5\nv_add_u32 v7, s73, v7")
    A(f"ds_read_b32 v122, v7 offset:{L_MLT}")
    A("s_waitcnt lgkmcnt(0)")
    A("v_mov_b32 v112, v120")
    rowred("v_max_f32", [112])
    A(f"v_bfi_b32 v112, v{VFF}, s65, v112")
    A("v_sub_f32 v122, v122, v112\nv_exp_f32 v123, v122")
    A("s_cmp_lg_u32 s3, 5\ns_cbranch_scc1 L_noml")
    A("v_sub_f32 v120, v120, v112\nv_exp_f32 v120, v120\nv_mul_f32 v113, v120, v121")
    rowred("v_add_f32", [113])
    A(f"v_bfi_b32 v113, v{VFF}, s66, v113\nv_mov_b32 v114, s67\nv_mov_b32 v115, s68")
    A(f"s_lshl_b32 s73, s78, 6\ns_add_u32 s73, s73, {WS_ML:#x}")
    A("s_mov_b32 exec_lo, 0x10001\ns_mov_b32 exec_hi, 0x10001")
    A("buffer_store_dwordx4 v[112:115], v1, s[44:47], s73 offen sc1")
    A("s_mov_b64 exec, -1")
    A.label("L_noml")
    A("s_cmp_eq_u32 s76, 1\ns_cbranch_scc1 L_pv")
    A.label("L_after")
    for d in range(8): A(f"v_mul_f32 v{112+d}, v{16+4*d}, v123")
    A(f"v_lshlrev_b32 v7, 2, v1\nv_mov_b32 v8, {L_CNT}\nv_mov_b32 v9, 1")
    for d in range(8): A(f"ds_add_f32 v7, v{112+d} offset:{L_ACC+256*d}")
    A("s_mov_b64 exec, 1\nds_add_rtn_u32 v10, v8, v9\ns_mov_b64 exec, -1")
    for d in range(4): A(f"ds_read2st64_b32 v[{112+2*d}:{113+2*d}], v7 offset0:{L_ACC//256+2*d} offset1:{L_ACC//256+2*d+1}")
    A("s_waitcnt lgkmcnt(0)")
    A("v_readfirstlane_b32 s73, v10\ns_cmp_lg_u32 s73, 15\ns_cbranch_scc1 L_nopub")
    tag4(112, [112, 113, 114, 115]); tag4(116, [116, 117, 118, 119])
    A(f"s_lshl_b32 s73, s78, 11\ns_add_u32 s73, s73, {WS_OP:#x}")
    A("buffer_store_dwordx4 v[112:115], v3, s[44:47], s73 offen sc1\nbuffer_store_dwordx4 v[116:119], v3, s[44:47], s73 offen offset:1024 sc1")
    A.label("L_nopub")
    stamp(7)
    A("s_and_b32 s73, s3, 14\ns_cmp_eq_u32 s73, 2\ns_cbranch_scc1 L_wojob")
    A("s_cmp_lg_u32 s3, 4\ns_cbranch_scc1 L_fin\ns_cmp_ge_u32 s2, 64\ns_cbranch_scc1 L_fin")
    srd(56, 36, 2048)
    A("v_and_b32 v7, 3, v1\nv_lshl_add_u32 v126, v7, 2, v4\nv_lshlrev_b32 v126, 1, v126")
    A("v_lshrrev_b32 v127, 2, v1\nv_lshlrev_b32 v127, 9, v127\nv_lshl_add_u32 v127, v7, 4, v127")
    def sloads():
        for t in range(4):
            if t: A(f"s_add_u32 s73, s79, {t*8192}")
            A(f"buffer_load_dwordx4 v[{48+4*t}:{51+4*t}], v127, s[44:47], {'s73' if t else 's79'} offen sc1")
    poll(sloads, 64, 48, 16)
    stamp(8)
    for e in range(4): A(f"v_add_f32 v{48+e}, v{48+e}, v{52+e}\nv_add_f32 v{56+e}, v{56+e}, v{60+e}")
    for e in range(4): A(f"v_add_f32 v{48+e}, v{48+e}, v{56+e}")
    finred(48)
    bf16r([48])
    A("v_mul_f32 v48, v48, v124")
    bf16r([48])
    A("v_add_f32 v48, v48, v125\nv_cvt_pk_bf16_f32 v48, v48, v48")
    A("s_mov_b32 exec_lo, 0x000f000f\ns_mov_b32 exec_hi, 0x000f000f")
    A("buffer_store_short v48, v126, s[56:59], s43 offen")
    A("s_cmp_lg_u32 s2, 0\ns_cbranch_scc1 L_fin0")
    A("s_mov_b64 exec, 1\nv_mov_b32 v49, s65\nv_mov_b32 v50, 0\nbuffer_store_dword v49, v50, s[44:47], 0 offen")
    A.label("L_fin0")
    A("s_mov_b64 exec, -1")
    A("s_branch L_fin")
    A.label("L_wojob")
    A("v_and_b32 v8, 7, v6\nv_lshlrev_b32 v8, 1, v8\nv_lshrrev_b32 v9, 1, v4\nv_lshrrev_b32 v10, 3, v6\nv_xor_b32 v10, v9, v10\nv_add_u32 v8, v8, v10")
    A("v_and_b32 v10, 1, v4\nv_lshl_add_u32 v8, v10, 4, v8\nv_lshlrev_b32 v8, 6, v8")
    A(f"s_lshl_b32 s42, s4, 11\ns_lshl_b32 s73, s79, 4\ns_add_u32 s42, s42, s73\ns_add_u32 s42, s42, {WS_ML:#x}")
    A("v_lshl_add_u32 v11, v10, 4, v9\nv_lshlrev_b32 v11, 11, v11\nv_lshl_add_u32 v11, v6, 4, v11")
    A("v_lshlrev_b32 v12, 7, v10\nv_lshl_add_u32 v12, v6, 3, v12\nv_lshl_add_u32 v12, v9, 2, v12")
    A("v_bfe_u32 v13, v1, 2, 1\nv_lshlrev_b32 v13, 7, v13\nv_lshl_add_u32 v13, v4, 4, v13")
    A("s_lshl_b32 s73, s3, 8\nv_add_u32 v12, s73, v12\nv_add_u32 v13, s73, v13")
    poll(lambda: A("buffer_load_dwordx4 v[16:19], v8, s[44:47], s42 offen sc1"), 20, 16, 4)
    A("v_mov_b32 v20, v16")
    rowred("v_max_f32", [20])
    A("v_sub_f32 v16, v16, v20\nv_exp_f32 v16, v16\nv_mul_f32 v17, v16, v17")
    rowred("v_add_f32", [17])
    A("v_rcp_f32 v17, v17\nv_mul_f32 v14, v16, v17")
    A(f"s_lshl_b32 s42, s4, 16\ns_lshl_b32 s73, s43, 10\ns_add_u32 s42, s42, s73\ns_lshl_b32 s73, s79, 8\ns_add_u32 s42, s42, s73\ns_add_u32 s42, s42, {WS_OP:#x}")
    def oloads():
        for t in range(8):
            if t: A(f"s_add_u32 s73, s42, {t*4096}")
            A(f"buffer_load_dwordx4 v[{48+4*t}:{51+4*t}], v11, s[44:47], {'s73' if t else 's42'} offen sc1")
    poll(oloads, 20, 48, 32)
    stamp(8)
    for t in range(8):
        for e in range(4):
            op = "v_mul_f32_dpp" if t == 0 else "v_fmac_f32_dpp"
            A(f"{op} v{16+e}, v14, v{48+4*t+e} row_newbcast:{t} {DPPF}")
    A("v_permlane32_swap_b32 v16, v18\nv_permlane32_swap_b32 v17, v19\nv_add_f32 v16, v16, v18\nv_add_f32 v17, v17, v19\nv_cvt_pk_bf16_f32 v16, v16, v17")
    A(f"ds_write_b32 v12, v16 offset:{L_SCR}")
    A(f"ds_read_b128 v[20:23], v13 offset:{L_SCR}\nds_read_b128 v[24:27], v13 offset:{L_SCR+64}")
    A("s_and_b32 s42, s5, 7\ns_lshl_b32 s42, s42, 6\ns_lshl_b32 s73, s4, 3\ns_add_u32 s42, s42, s73\ns_lshl_b32 s73, s79, 1\ns_add_u32 s42, s42, s73\ns_add_u32 s42, s42, s43")
    A(f"s_lshl_b32 s42, s42, 9\ns_add_u32 s42, s42, {WS_SP:#x}")
    A("s_waitcnt lgkmcnt(0)")
    tile_mfma(28, 20, 80, True)
    tile_mfma(28, 24, 96, False)
    publish512(28, 16, 42)
    A.label("L_fin")
    if debug:
        stamp(9)
        A("s_waitcnt lgkmcnt(0)")
        for k in range(10): A(f"v_mov_b32 v{16+k}, s{80+2*k}")
        A("s_getreg_b32 s73, hwreg(HW_REG_XCC_ID)\nv_mov_b32 v26, s73\nv_mov_b32 v27, s75")
        A(f"s_lshl_b32 s73, s2, 4\ns_add_u32 s73, s73, s3\ns_lshl_b32 s73, s73, 6\ns_add_u32 s73, s73, {WS_STAMP:#x}")
        A("v_mov_b32 v7, 0\ns_mov_b64 exec, 1")
        for q in range(3): A(f"buffer_store_dwordx4 v[{16+4*q}:{19+4*q}], v7, s[44:47], s73 offen offset:{16*q}")
    A.label("L_end")
    A("s_endpgm")
    A('.section .rodata,"a"\n.p2align 6')
    A(f".amdhsa_kernel {NAME}_kernel\n.amdhsa_next_free_vgpr 128\n.amdhsa_next_free_sgpr 102\n.amdhsa_accum_offset 128")
    A(".amdhsa_group_segment_fixed_size 0\n.amdhsa_kernarg_size 104\n.amdhsa_user_sgpr_count 2\n.amdhsa_user_sgpr_kernarg_segment_ptr 1\n.amdhsa_system_sgpr_workgroup_id_x 1\n.end_amdhsa_kernel")
    return A.finish()

if __name__ == "__main__":
    open("k1.s", "w").write(gen(False))
    open("k1d.s", "w").write(gen(True))
```

```python
import sys
from asmlib import Asm
NAME = "recurrent_scan__gqa_block_cached__mixer_channel_mlp__decode"

WS_EPOCH = 0
WS_XI = 0x400
WS_ML = 0x800
WS_QX = 0x4000
WS_HX = 0x8000
WS_MP = 0xc000
WS_OP = 0x10000
WS_SP = 0x20000
WS_STAMP = 0x8000000
WS_SIZE = 0x10000000
L_QF = 0
L_FLAG = 1024
L_C0 = 1028
L_C1 = 1032
L_C2 = 1036
L_C3 = 1040
L_C4 = 1044
L_FML = 1048
L_GL = 1280
L_MLT = 1536
L_XS0 = 2048
L_XS1 = 4096
L_SCR = 6144
L_OPL = 10240
L_WOT = L_OPL + 16 * 2048
LDS_BYTES = L_WOT + 16384

DPPF = "row_mask:0xf bank_mask:0xf"
TIMEOUT = 200000

def gen(debug=False, opts=None):
    o = dict(nt=True, sleep_q=8, sleep_h=16, sleep_t=0, W=2, Spos=12, Sx=1, Wend=8, W01=8, sleep_ml=16, SL=0x40000, kvmap=0, ldnt=False, thr=(12, 12, 12, 12), local=True, ml_delay=0, xmask=0x1f800, touch=True)
    o.update(opts or {})
    NT = " nt" if o["nt"] else ""
    A = Asm()
    uid = [0]
    def lab(s):
        uid[0] += 1
        return f"L_{s}_{uid[0]}"
    def stamp(k):
        if debug: A(f"s_memrealtime s[{80+2*k}:{81+2*k}]")
    def srd(d, p, size):
        A(f"s_mov_b32 s{d}, s{p}\ns_mov_b32 s{d+1}, s{p+1}\ns_mov_b32 s{d+2}, {size:#x}\ns_mov_b32 s{d+3}, 0x00020000")
    def tags():
        A("s_add_u32 s68, s64, 0x01010101\ns_and_b32 s65, s68, 0xff\ns_bfe_u32 s66, s68, 0x80008\ns_bfe_u32 s67, s68, 0x80010\ns_lshr_b32 s68, s68, 24")
    VFF = 5
    def tag4(dst, srcs):
        for j in range(4): A(f"v_bfi_b32 v{dst+j}, v{VFF}, s{65+j}, v{srcs[j]}")
    def check(acc, base, n, masked=()):
        for i in range(n):
            if i in masked and i - 1 not in masked: A("s_mov_b32 exec_hi, 0xffff")
            A(f"v_xor_b32 v{base+i}, s{65 + i % 4}, v{base+i}")
            if i in masked and i + 1 not in masked: A("s_mov_b32 exec_hi, -1")
        A(f"v_or3_b32 v{acc}, v{base}, v{base+1}, v{base+2}")
        i = 3
        while i < n:
            if i + 1 < n: A(f"v_or3_b32 v{acc}, v{acc}, v{base+i}, v{base+i+1}"); i += 2
            else: A(f"v_or_b32 v{acc}, v{acc}, v{base+i}"); i += 1
        A(f"v_and_b32 v{acc}, v{VFF}, v{acc}")
        A(f"v_cmp_ne_u32 vcc, 0, v{acc}")
    def poll(loads, acc, base, n, pre="", post="", sleep=1, masked=()):
        l0 = lab("poll"); l1 = lab("pok")
        A(f"s_mov_b32 s75, {TIMEOUT}")
        A.label(l0)
        A(pre)
        loads()
        A("s_waitcnt vmcnt(0)")
        check(acc, base, n, masked)
        A(post)
        A(f"s_cbranch_vccz {l1}")
        A(f"s_sub_u32 s75, s75, 1\ns_cmp_eq_u32 s75, 0\ns_cbranch_scc1 {l1}")
        if sleep: A(f"s_sleep {sleep}")
        A(f"s_branch {l0}")
        A.label(l1)
    def rowred(op, regs):
        for sh in (8, 4, 2, 1):
            for r in regs: A(f"{op}_dpp v{r}, v{r}, v{r} row_ror:{sh} {DPPF}")
    def xred(op, regs, tmps, which=(16, 32)):
        for w in which:
            for r, t in zip(regs, tmps): A(f"v_mov_b32 v{t}, v{r}")
            for r, t in zip(regs, tmps): A(f"v_permlane{w}_swap_b32 v{r}, v{t}")
            for r, t in zip(regs, tmps): A(f"{op} v{r}, v{r}, v{t}")
    def unpack(dst, src, n):
        for i in range(n):
            A(f"v_lshlrev_b32 v{dst+2*i}, 16, v{src+i}")
            A(f"v_and_b32 v{dst+2*i+1}, s77, v{src+i}")
    def layernorm(xp, u, t):
        unpack(u, xp, 8)
        for b in range(2):
            A(f"v_add_f32 v{t+b}, v{u+8*b}, v{u+8*b+1}")
            for i in range(2, 8): A(f"v_add_f32 v{t+b}, v{t+b}, v{u+8*b+i}")
        rowred("v_add_f32", [t, t+1])
        xred("v_add_f32", [t, t+1], [t+2, t+3])
        A(f"v_mul_f32 v{t}, 0x3b000000, v{t}\nv_mul_f32 v{t+1}, 0x3b000000, v{t+1}")
        for b in range(2):
            for i in range(8):
                A(f"v_sub_f32 v{t+4}, v{u+8*b+i}, v{t+b}")
                if i == 0: A(f"v_mul_f32 v{t+2+b}, v{t+4}, v{t+4}")
                else: A(f"v_fmac_f32 v{t+2+b}, v{t+4}, v{t+4}")
        rowred("v_add_f32", [t+2, t+3])
        xred("v_add_f32", [t+2, t+3], [t+4, t+5])
        A(f"v_mul_f32 v{t+2}, 0x3b000000, v{t+2}\nv_mul_f32 v{t+3}, 0x3b000000, v{t+3}")
        A(f"v_cvt_pk_bf16_f32 v{t+4}, v{t}, v{t+1}")
        A(f"v_cvt_pk_bf16_f32 v{t+5}, v{t+2}, v{t+3}")
        unpack(t, t+4, 2)
        A(f"v_add_f32 v{t+2}, 0x3727c5ac, v{t+2}\nv_add_f32 v{t+3}, 0x3727c5ac, v{t+3}")
        A(f"v_cvt_pk_bf16_f32 v{t+5}, v{t+2}, v{t+3}")
        unpack(t+2, t+5, 1)
        A(f"v_sqrt_f32 v{t+2}, v{t+2}\nv_sqrt_f32 v{t+3}, v{t+3}")
        A(f"v_cvt_pk_bf16_f32 v{t+5}, v{t+2}, v{t+3}")
        unpack(t+2, t+5, 1)
        A(f"v_rcp_f32 v{t+2}, v{t+2}\nv_rcp_f32 v{t+3}, v{t+3}")
        for b in range(2):
            for i in range(8): A(f"v_sub_f32 v{u+8*b+i}, v{u+8*b+i}, v{t+b}")
        for i in range(8): A(f"v_cvt_pk_bf16_f32 v{xp+i}, v{u+2*i}, v{u+2*i+1}")
        unpack(u, xp, 8)
        for b in range(2):
            for i in range(8): A(f"v_mul_f32 v{u+8*b+i}, v{u+8*b+i}, v{t+2+b}")
        for i in range(8): A(f"v_cvt_pk_bf16_f32 v{xp+i}, v{u+2*i}, v{u+2*i+1}")
    def tile_loads(dst, nks, voff, srdr, sbase, rowoff, W=0, pending=0):
        for ks in range(nks):
            for i in range(8):
                off = rowoff(ks, i)
                r = dst + (ks * 8 + i) * 2
                hi, lo = off & ~0xfff, off & 0xfff
                if hi == 0: so = f"s{sbase}"
                else:
                    A(f"s_add_u32 s73, s{sbase}, {hi:#x}"); so = "s73"
                if W and ks * 8 + i + pending >= W: A(f"s_waitcnt vmcnt({W-1})")
                A(f"buffer_load_dwordx2 v[{r}:{r+1}], v{voff}, s[{srdr}:{srdr+3}], {so} offen offset:{lo}{NT}")
    def tile_perm(src, ks, T):
        for j in range(2):
            for p in range(4):
                a = src + (ks * 8 + 2 * p) * 2 + j; b = src + (ks * 8 + 2 * p + 1) * 2 + j
                A(f"v_perm_b32 v{T+4*(2*j)+p}, v{b}, v{a}, s69")
                A(f"v_perm_b32 v{T+4*(2*j+1)+p}, v{b}, v{a}, s70")
    def tile_mfma(D, Af, T, first):
        for d in range(4):
            c = "0" if first else f"v[{D+4*d}:{D+4*d+3}]"
            A(f"v_mfma_f32_16x16x32_bf16 v[{D+4*d}:{D+4*d+3}], v[{Af}:{Af+3}], v[{T+4*d}:{T+4*d+3}], {c}")
    def publish512(D, tmp, soff):
        tag4(tmp, [D, D+4, D+8, D+12])
        A("s_mov_b32 exec_hi, 0")
        A(f"buffer_store_dwordx4 v[{tmp}:{tmp+3}], v3, s[44:47], s{soff} offen sc1")
        A("s_mov_b32 exec_hi, -1")
    def bf16r(regs):
        for r in regs: A(f"v_cvt_pk_bf16_f32 v{r}, v{r}, v{r}")
        for r in regs: A(f"v_and_b32 v{r}, s77, v{r}")


    def ldswait(addr_reg, target, extra="", sleep=1, dst=None):
        l0 = lab("lw"); l1 = lab("lok")
        A(f"s_mov_b32 s75, {TIMEOUT*4}")
        A.label(l0)
        A(f"ds_read_b32 v{dst}, v{addr_reg}")
        A(extra)
        A("s_waitcnt lgkmcnt(0)")
        A(f"v_readfirstlane_b32 s73, v{dst}\ns_cmp_ge_u32 s73, {target}\ns_cbranch_scc1 {l1}")
        A(f"s_sub_u32 s75, s75, 1\ns_cmp_eq_u32 s75, 0\ns_cbranch_scc1 {l1}")
        if sleep: A(f"s_sleep {sleep}")
        A(f"s_branch {l0}")
        A.label(l1)
    def bump(addr_reg, one_reg):
        A(f"s_mov_b64 exec, 1\nds_add_u32 v{addr_reg}, v{one_reg}\ns_mov_b64 exec, -1")
    def finred(a):
        A(f"v_permlane32_swap_b32 v{a}, v{a+2}\nv_permlane32_swap_b32 v{a+1}, v{a+3}\nv_add_f32 v{a}, v{a}, v{a+2}\nv_add_f32 v{a+1}, v{a+1}, v{a+3}")
        A(f"v_permlane16_swap_b32 v{a}, v{a+1}\nv_add_f32 v{a}, v{a}, v{a+1}")
        A(f"v_add_f32_dpp v{a}, v{a}, v{a} row_ror:8 {DPPF}\nv_add_f32_dpp v{a}, v{a}, v{a} row_ror:4 {DPPF}")


    def kload(t, so, off): A(f"buffer_load_dwordx4 v[{16+4*t}:{19+4*t}], v2, s[8:11], {so} offen offset:{off}{NT}")
    def vload(t, so, off): A(f"buffer_load_dwordx4 v[{48+4*t}:{51+4*t}], v3, s[12:15], {so} offen offset:{off}{NT}")
    BS = ["s96", "s97", "s98", "s99"] if not debug else ["s100", "s101", "s72", "s74"]
    def svc_k(W, pending=0):
        for t in range(8):
            if t + pending >= W: A(f"s_waitcnt vmcnt({W-1})")
            kload(t, BS[t >> 1], (t & 1) * 1024)

    A(f"; @launch grid=(256,1,1) block=(1024,1,1) lds={LDS_BYTES}")
    A('.amdgcn_target "amdgcn-amd-amdhsa--gfx950"\n.text')
    A(f".globl {NAME}_kernel\n.p2align 8\n.type {NAME}_kernel,@function\n{NAME}_kernel:")
    A("s_cmp_ge_u32 s2, 256\ns_cbranch_scc1 L_end")
    A("s_load_dwordx16 s[16:31], s[0:1], 0\ns_load_dwordx8 s[32:39], s[0:1], 64\ns_load_dwordx2 s[40:41], s[0:1], 96")
    if debug:
        for k in range(10): A(f"s_mov_b64 s[{80+2*k}:{81+2*k}], 0")
    stamp(0)
    A("v_lshrrev_b32 v4, 6, v0\nv_and_b32 v1, 63, v0\nv_readfirstlane_b32 s3, v4")
    A(f"v_lshlrev_b32 v6, 2, v1\nv_mov_b32 v7, 0\nds_write_b32 v6, v7 offset:{L_FLAG}")
    A("s_and_b32 s4, s2, 7\ns_lshr_b32 s5, s2, 3\ns_lshr_b32 s6, s5, 4\ns_and_b32 s7, s5, 15")
    A("s_lshl_b32 s72, s6, 3\ns_add_u32 s72, s72, s4\ns_lshl_b32 s72, s72, 21\ns_lshl_b32 s73, s7, " + str(17 - o["kvmap"]) + "\ns_add_u32 s75, s72, s73")
    A("s_lshl_b32 s73, s3, 2\ns_add_u32 s73, s73, 48\ns_sub_u32 s74, s3, 4\ns_cmp_lt_u32 s3, 4\ns_cselect_b32 s73, s73, s74\ns_cselect_b32 s76, 1, 12")
    A("s_lshl_b32 s73, s73, 11\ns_lshl_b32 s76, s76, 11")
    A(f"s_add_u32 s79, s2, 1\ns_mul_i32 s79, s79, 0x9e3779b1\ns_lshr_b32 s79, s79, 8\ns_mul_i32 s79, s79, 0x85ebca6b\ns_lshr_b32 s79, s79, 9\ns_and_b32 s79, s79, {o['xmask']:#x}")
    km = o["kvmap"]
    for k in range(4):
        A("s_xor_b32 s42, s73, s79")
        if km:
            A(f"s_lshr_b32 s43, s42, {17-km}\ns_lshl_b32 s43, s43, {21-km}\ns_and_b32 s42, s42, {(1 << (17-km)) - 1:#x}\ns_add_u32 s42, s42, s43")
        A(f"s_add_u32 {BS[k]}, s75, s42")
        if k < 3: A("s_add_u32 s73, s73, s76")
    A("v_lshlrev_b32 v3, 4, v1")
    A("v_bfe_u32 v2, v1, 2, 2\nv_lshlrev_b32 v2, 8, v2\nv_lshrrev_b32 v4, 4, v1\nv_lshl_add_u32 v2, v4, 6, v2")
    A("v_and_b32 v6, 3, v1\nv_lshl_add_u32 v2, v6, 4, v2")
    A("v_and_b32 v6, 15, v1")
    A(f"v_mov_b32 v{VFF}, 0xff")
    A("s_mov_b32 s69, 0x05040100\ns_mov_b32 s70, 0x07060302\ns_mov_b32 s71, 0x3e0293ee\ns_mov_b32 s77, 0xffff0000")
    A(f"s_mul_i32 s78, s4, {o['SL']:#x}\ns_and_b32 s7, s5, 7\ns_mul_i32 s7, s7, {o['SL']:#x}")
    A("s_waitcnt lgkmcnt(0)")
    A("s_load_dword s64, s[40:41], 0")
    srd(8, 18, 0x2000000); srd(12, 20, 0x2000000); srd(44, 40, WS_SIZE)
    A("s_cmp_ge_u32 s3, 4\ns_cbranch_scc1 L_stream")
    A("s_cmp_eq_u32 s3, 0\ns_cbranch_scc1 L_w0")
    A("s_cmp_eq_u32 s3, 2\ns_cbranch_scc1 L_w2")
    A("s_cmp_ge_u32 s2, 224\ns_cbranch_scc1 L_wplain")
    A("s_cmp_eq_u32 s3, 1\ns_cbranch_scc1 L_w1")
    A("s_branch L_w3")

    A.label("L_stream")
    A("s_barrier")
    W = o["W"]; Spos = o["Spos"]
    for n in range(Spos):
        if W <= n < Spos - o["Sx"]: A(f"s_waitcnt vmcnt({W-1})")
        (kload if n < 8 else vload)(n % 8, BS[(n % 8) >> 1], (n & 1) * 1024)
    A(f"s_waitcnt vmcnt({Spos-8})")
    A("s_branch L_sphase")

    A.label("L_w0")
    A("s_setprio 3")
    srd(48, 16, 2048); srd(52, 22, 0x400000)
    A("buffer_load_dwordx4 v[8:11], v3, s[48:51], 0 offen\nbuffer_load_dwordx4 v[12:15], v3, s[48:51], 0 offen offset:1024")
    A("v_lshlrev_b32 v7, 16, v4\nv_lshl_add_u32 v7, v6, 3, v7")
    A("s_lshr_b32 s79, s5, 3\ns_lshl_b32 s42, s79, 20\ns_and_b32 s73, s5, 7\ns_lshl_b32 s73, s73, 7\ns_add_u32 s42, s42, s73")
    A("s_lshl_b32 s73, s4, 10\ns_add_u32 s42, s42, s73")
    tile_loads(16, 4, 7, 52, 42, lambda ks, i: (32 * ks + i) * 8192)
    A("s_barrier")
    A("s_waitcnt vmcnt(32)")
    stamp(1)
    layernorm(8, 96, 112)
    A(f"ds_write_b128 v3, v[8:11] offset:{L_XS0}\nds_write_b128 v3, v[12:15] offset:{L_XS0+1024}")
    A("v_bfe_u32 v7, v1, 2, 1\nv_lshlrev_b32 v7, 10, v7\nv_lshl_add_u32 v7, v4, 4, v7\ns_lshl_b32 s73, s79, 8\nv_add_u32 v7, s73, v7")
    for ks in range(4): A(f"ds_read_b128 v[{96+4*ks}:{99+4*ks}], v7 offset:{L_XS0+64*ks}")
    A("s_waitcnt lgkmcnt(0)")
    tags()
    for ks in range(4):
        A(f"s_waitcnt vmcnt({24-8*ks})")
        tile_perm(16, ks, 80)
        tile_mfma(112, 96 + 4 * ks, 80, ks == 0)
    A(f"s_lshl_b32 s42, s5, 9\ns_add_u32 s42, s42, s78\ns_add_u32 s42, s42, {WS_QX:#x}")
    publish512(112, 8, 42)
    A("s_getreg_b32 s73, hwreg(HW_REG_XCC_ID, 0, 4)\ns_lshl_b32 s73, s73, 8\ns_or_b32 s73, s73, s65")
    A("v_mov_b32 v12, s73\nv_mov_b32 v13, s66\nv_mov_b32 v14, s67\nv_mov_b32 v15, s68")
    A(f"s_lshl_b32 s42, s5, 4\ns_add_u32 s42, s42, s78\ns_add_u32 s42, s42, {WS_XI:#x}\ns_mov_b64 exec, 1")
    A("buffer_store_dwordx4 v[12:15], v3, s[44:47], s42 offen sc1\ns_mov_b64 exec, -1")
    stamp(2)
    A("s_branch L_w01k")

    A.label("L_w1")
    A("s_setprio 2")
    srd(48, 16, 2048); srd(52, 28, 512 * 3584)
    A("buffer_load_dwordx4 v[8:11], v3, s[48:51], 0 offen\nbuffer_load_dwordx4 v[12:15], v3, s[48:51], 0 offen offset:1024")
    A("v_mul_u32_u24 v7, 0x7000, v4\nv_lshl_add_u32 v7, v6, 3, v7")
    A("s_mul_i32 s42, s4, 0x38000\ns_lshl_b32 s73, s5, 7\ns_add_u32 s42, s42, s73")
    tile_loads(48, 2, 7, 52, 42, lambda ks, i: (32 * ks + i) * 3584)
    A("s_barrier")
    svc_k(8)
    A("s_waitcnt vmcnt(24)")
    stamp(1)
    layernorm(8, 96, 112)
    layernorm(8, 96, 112)
    A(f"ds_write_b128 v3, v[8:11] offset:{L_XS1}\nds_write_b128 v3, v[12:15] offset:{L_XS1+1024}")
    A("v_bfe_u32 v7, v1, 2, 1\nv_lshlrev_b32 v7, 10, v7\nv_lshl_add_u32 v7, v4, 4, v7\ns_lshl_b32 s73, s4, 7\nv_add_u32 v7, s73, v7")
    for ks in range(2): A(f"ds_read_b128 v[{96+4*ks}:{99+4*ks}], v7 offset:{L_XS1+64*ks}")
    A("s_waitcnt lgkmcnt(0)")
    tags()
    for ks in range(2):
        A(f"s_waitcnt vmcnt({16-8*ks})")
        tile_perm(48, ks, 80)
        tile_mfma(104, 96 + 4 * ks, 80, ks == 0)
    A(f"s_lshr_b32 s42, s5, 3\ns_lshl_b32 s42, s42, 12\ns_lshl_b32 s73, s4, 9\ns_add_u32 s42, s42, s73\ns_add_u32 s42, s42, s7\ns_add_u32 s42, s42, {WS_HX:#x}")
    publish512(104, 8, 42)
    stamp(2)
    A("s_setprio 0\ns_waitcnt vmcnt(1)\ns_branch L_sphase")
    A.label("L_wplain")
    A("s_barrier")
    A.label("L_w01k")
    A("s_setprio 0")
    svc_k(o["W01"])
    A("s_waitcnt vmcnt(0)\ns_branch L_sphase")

    A.label("L_w3")
    srd(56, 32, 1792 * 1024); srd(60, 30, 3584)
    A("v_lshrrev_b32 v0, 1, v4\nv_lshlrev_b32 v0, 2, v0\nv_lshl_add_u32 v0, v6, 3, v0")
    A("v_lshlrev_b32 v7, 13, v4\nv_lshl_add_u32 v7, v6, 3, v7")
    A("s_lshl_b32 s42, s5, 16\ns_lshl_b32 s73, s4, 7\ns_add_u32 s42, s42, s73")
    A("s_barrier")
    tile_loads(48, 2, 7, 56, 42, lambda ks, i: (32 * ks + i) * 1024)
    A("s_lshl_b32 s73, s5, 7")
    A("buffer_load_dword v15, v0, s[60:63], s73 offen")
    svc_k(8)
    A("s_waitcnt vmcnt(0)")
    if o.get("hdelay"): A(f"s_sleep {o['hdelay']}")
    A(f"s_lshr_b32 s42, s5, 3\ns_lshl_b32 s42, s42, 12\ns_add_u32 s42, s42, s7\ns_add_u32 s42, s42, {WS_HX:#x}")
    A("s_waitcnt lgkmcnt(0)")
    tags()
    stamp(1)
    def hloads():
        for t in range(4): A(f"buffer_load_dwordx4 v[{112+4*t}:{115+4*t}], v3, s[44:47], s42 offen offset:{t*1024} sc1")
    poll(hloads, 8, 112, 16, sleep=o["sleep_h"])
    stamp(2)
    for e in range(4): A(f"v_add_f32 v{112+e}, v{112+e}, v{116+e}\nv_add_f32 v{120+e}, v{120+e}, v{124+e}")
    for e in range(4): A(f"v_add_f32 v{112+e}, v{112+e}, v{120+e}")
    A("v_permlane32_swap_b32 v112, v114\nv_permlane32_swap_b32 v113, v115\nv_add_f32 v112, v112, v114\nv_add_f32 v113, v113, v115")
    bf16r([112, 113])
    unpack(114, 15, 1)
    A("v_add_f32 v112, v112, v114\nv_add_f32 v113, v113, v115")
    bf16r([112, 113])
    A("s_mov_b32 s73, 0x3d372713")
    for r in (112, 113):
        A(f"v_mul_f32 v{r+2}, v{r}, v{r}\nv_fma_f32 v{r+2}, v{r+2}, s73, 1.0\nv_mul_f32 v{r+2}, v{r+2}, v{r}\nv_mul_f32 v{r+2}, 0xc0135761, v{r+2}")
    A("v_exp_f32 v114, v114\nv_exp_f32 v115, v115\nv_add_f32 v114, 1.0, v114\nv_add_f32 v115, 1.0, v115\nv_rcp_f32 v114, v114\nv_rcp_f32 v115, v115")
    A("v_mul_f32 v112, v112, v114\nv_mul_f32 v113, v113, v115\nv_cvt_pk_bf16_f32 v112, v112, v113")
    A("v_and_b32 v7, 1, v4\nv_lshl_add_u32 v7, v7, 7, v0")
    A(f"ds_write_b32 v7, v112 offset:{L_SCR+256}")
    A("v_bfe_u32 v7, v1, 2, 1\nv_lshlrev_b32 v7, 7, v7\nv_lshl_add_u32 v7, v4, 4, v7")
    for ks in range(2): A(f"ds_read_b128 v[{8+4*ks}:{11+4*ks}], v7 offset:{L_SCR+256+64*ks}")
    tile_perm(48, 0, 80)
    tile_perm(48, 1, 96)
    A("s_waitcnt lgkmcnt(0)")
    tile_mfma(112, 8, 80, True)
    tile_mfma(112, 12, 96, False)
    A(f"s_lshl_b32 s42, s5, 9\ns_add_u32 s42, s42, s78\ns_add_u32 s42, s42, {WS_MP:#x}")
    publish512(112, 8, 42)
    stamp(3)
    A("s_branch L_sphase")
    A.label("L_w2")
    A("v_lshlrev_b32 v7, 9, v4\nv_lshl_add_u32 v7, v6, 4, v7")
    A(f"s_lshl_b32 s73, s6, 8\ns_add_u32 s42, s78, s73\ns_add_u32 s42, s42, {WS_QX:#x}")
    srd(52, 24, 0x400000)
    A("v_lshlrev_b32 v15, 14, v4\nv_lshl_add_u32 v15, v6, 3, v15")
    A("s_lshr_b32 s79, s5, 3\ns_lshl_b32 s43, s4, 19\ns_lshl_b32 s73, s79, 17\ns_add_u32 s43, s43, s73")
    A("s_and_b32 s73, s5, 7\ns_lshl_b32 s73, s73, 7\ns_add_u32 s43, s43, s73")
    A("s_barrier")
    tile_loads(48, 4, 15, 52, 43, lambda ks, i: (64 * (ks & 1) + 4 * (ks >> 1) + 8 * (i >> 2) + (i & 3)) * 1024)
    svc_k(8)
    for ks in range(4):
        A(f"s_waitcnt vmcnt({32-8*ks})")
        if ks: A("s_waitcnt lgkmcnt(0)")
        tile_perm(48, ks, 112)
        for k in range(4): A(f"ds_write_b128 v3, v[{112+4*k}:{115+4*k}] offset:{L_WOT+4096*ks+1024*k}")
    A("s_waitcnt vmcnt(0) lgkmcnt(0)")
    if o.get("qdelay"): A(f"s_sleep {o['qdelay']}")
    tags()
    stamp(1)
    def qloads():
        for kq in range(4):
            if kq: A(f"s_add_u32 s73, s42, {kq*4096}")
            so = "s73" if kq else "s42"
            for u in range(2):
                r = 80 + (kq * 2 + u) * 4
                A(f"buffer_load_dwordx4 v[{r}:{r+3}], v7, s[44:47], {so} offen offset:{u*2048} sc1")
        A("buffer_load_dwordx4 v[112:115], v9, s[44:47], s43 offen sc1")
    A(f"v_and_b32 v9, 0x1ff, v3\ns_add_u32 s43, s78, {WS_XI:#x}")
    poll(qloads, 8, 80, 36, sleep=o["sleep_q"])
    A("s_getreg_b32 s73, hwreg(HW_REG_XCC_ID, 0, 4)\ns_lshl_b32 s73, s73, 8\nv_cmp_ne_u32 vcc, s73, v112")
    A("s_cmp_eq_u64 vcc, 0\ns_cselect_b32 s43, 2, 1")
    if debug: A("s_mov_b32 s84, s75")
    for u in range(2):
        for e in range(4):
            r = 80 + u * 4 + e
            A(f"v_add_f32 v{r}, v{r}, v{r+8}\nv_add_f32 v{r+16}, v{r+16}, v{r+24}")
    for r in range(80, 88): A(f"v_add_f32 v{r}, v{r}, v{r+16}")
    for i in range(4): A(f"v_cvt_pk_bf16_f32 v{8+i}, v{80+2*i}, v{81+2*i}")
    A("v_lshlrev_b32 v7, 3, v1")
    A(f"ds_write_b64 v7, v[8:9] offset:{L_QF}\nds_write_b64 v7, v[10:11] offset:{L_QF+512}")
    A(f"v_mov_b32 v7, {L_FLAG}\nv_mov_b32 v12, s43\nds_write_b32 v7, v12")
    stamp(3)
    A.label("L_sphase")
    stamp(4)
    A(f"v_mov_b32 v7, {L_FLAG}")
    ldswait(7, 1, extra=f"ds_read_b128 v[8:11], v2 offset:{L_QF}", sleep=2, dst=12)
    tags()
    for t in range(8):
        A(f"v_mfma_f32_16x16x32_bf16 v[{80+4*t}:{83+4*t}], v[{16+4*t}:{19+4*t}], v[8:11], 0")
    A("v_lshlrev_b32 v7, 1, v1\ns_lshl_b32 s73, s3, 5\nv_add_u32 v7, s73, v7")
    A(f"v_mov_b32 v8, {L_C0}\nv_mov_b32 v9, 1")
    for t in range(8): A(f"v_mov_b32_dpp v{112+t}, v{80+4*t} quad_perm:[0,0,0,0] {DPPF}")
    for s in range(1, 4):
        for t in range(8): A(f"v_add_f32_dpp v{112+t}, v{80+4*t+s}, v{112+t} quad_perm:[{s},{s},{s},{s}] {DPPF}")
    A("v_max3_f32 v120, v112, v113, v114\nv_max3_f32 v121, v115, v116, v117\nv_max3_f32 v120, v120, v118, v119\nv_max_f32 v120, v120, v121")
    xred("v_max_f32", [120], [121])
    A("v_mul_f32 v120, s71, v120")
    for t in range(8): A(f"v_fma_f32 v{112+t}, v{112+t}, s71, -v120")
    for t in range(8): A(f"v_exp_f32 v{112+t}, v{112+t}")
    A("v_add_f32 v121, v112, v113\nv_add_f32 v122, v114, v115\nv_add_f32 v123, v116, v117\nv_add_f32 v124, v118, v119")
    A("v_add_f32 v121, v121, v122\nv_add_f32 v123, v123, v124\nv_add_f32 v121, v121, v123")
    xred("v_add_f32", [121], [122])
    A("s_mov_b64 exec, 0x1111")
    A(f"ds_write_b64 v7, v[120:121] offset:{L_MLT}")
    bump(8, 9)
    stamp(5)
    A("s_cmp_lt_u32 s3, 4\ns_cbranch_scc1 L_svcmid")
    for n in range(Spos, 16):
        if o["Wend"] < 8: A(f"s_waitcnt vmcnt({o['Wend']-1})")
        vload(n % 8, BS[(n % 8) >> 1], (n & 1) * 1024)
    A(f"v_mov_b32 v8, {L_C3}")
    bump(8, 9)
    stamp(3)
    A(f"v_mov_b32 v8, {L_C1}")
    A("s_branch L_pphase")
    A.label("L_svcmid")
    A("s_cmp_lg_u32 s3, 0\ns_cbranch_scc1 L_noml")
    A(f"v_mov_b32 v7, {L_C0}\nv_lshlrev_b32 v10, 5, v6\nv_lshl_add_u32 v10, v4, 3, v10")
    ldswait(7, 16, extra=f"ds_read_b64 v[16:17], v10 offset:{L_MLT}", sleep=1, dst=8)
    A("s_setprio 3\nv_readfirstlane_b32 s76, v12\nv_mov_b32 v20, v16")
    rowred("v_max_f32", [20])
    A("v_and_b32 v20, 0xffffff00, v20")
    A("v_sub_f32 v16, v16, v20\nv_exp_f32 v16, v16\nv_mul_f32 v21, v16, v17")
    rowred("v_add_f32", [21])
    A(f"v_or_b32 v20, s65, v20\nv_bfi_b32 v21, v{VFF}, s66, v21\nv_mov_b32 v22, s67\nv_mov_b32 v23, s68")
    A(f"s_lshl_b32 s73, s5, 6\ns_add_u32 s73, s73, s78\ns_add_u32 s73, s73, {WS_ML:#x}")
    A("s_mov_b32 exec_lo, 0x10001\ns_mov_b32 exec_hi, 0x10001")
    if o["local"]:
        A("s_cmp_eq_u32 s76, 2\ns_cbranch_scc0 L_mlfar")
        A("buffer_store_dwordx4 v[20:23], v1, s[44:47], s73 offen\ns_branch L_mldone")
    A.label("L_mlfar")
    A("buffer_store_dwordx4 v[20:23], v1, s[44:47], s73 offen sc1")
    A.label("L_mldone")
    A("s_mov_b64 exec, -1")
    stamp(3)
    A.label("L_noml")
    if o["touch"]:
        A("s_cmp_lg_u32 s3, 2\ns_cbranch_scc1 L_notouch")
        A(f"s_lshl_b32 s73, s5, 11\ns_add_u32 s73, s73, s78\ns_add_u32 s73, s73, {WS_OP:#x}")
        A("buffer_load_dwordx4 v[16:19], v3, s[44:47], s73 offen sc1\nbuffer_load_dwordx4 v[20:23], v3, s[44:47], s73 offen offset:1024 sc1\ns_waitcnt vmcnt(0)")
        A.label("L_notouch")
    thr = o["thr"]
    A(f"s_mov_b32 s42, {thr[0] | thr[1] << 8 | thr[2] << 16 | thr[3] << 24:#x}\ns_lshl_b32 s73, s3, 3\ns_lshr_b32 s42, s42, s73\ns_and_b32 s42, s42, 0xff")
    A(f"v_mov_b32 v7, {L_C3}")
    ldswait(7, "s42", sleep=1, dst=8)
    A("s_setprio 3")
    for t in range(8): vload(t, BS[t >> 1], (t & 1) * 1024)
    A(f"v_mov_b32 v8, {L_C2}")
    stamp(8)
    A.label("L_pphase")
    A("v_and_b32 v0, 3, v1")
    for j in range(4): A(f"v_cmp_eq_u32 s[{48+2*j}:{49+2*j}], {j}, v0")
    for p in range(4): A(f"v_cvt_pk_bf16_f32 v{12+p}, v{112+2*p}, v{113+2*p}")
    for j in range(4):
        for p in range(4): A(f"v_cndmask_b32 v{16+4*j+p}, 0, v{12+p}, s[{48+2*j}:{49+2*j}]")
    A("s_lshl_b32 s73, s3, 11\nv_add_u32 v7, s73, v3")
    for p in range(4):
        A(f"s_waitcnt vmcnt({6-2*p})")
        for j in range(4):
            a = 48 + 8 * p + j; b = a + 4
            A(f"v_perm_b32 v{80+8*j+p}, v{b}, v{a}, s69\nv_perm_b32 v{84+8*j+p}, v{b}, v{a}, s70")
    for j in range(4):
        for hf in range(2):
            d = 4 * hf + j
            c = "0" if j == 0 else f"v[{32+4*hf}:{35+4*hf}]"
            A(f"v_mfma_f32_16x16x32_bf16 v[{32+4*hf}:{35+4*hf}], v[{16+4*j}:{19+4*j}], v[{80+4*d}:{83+4*d}], {c}")
    A(f"ds_write_b128 v7, v[32:35] offset:{L_OPL}\nds_write_b128 v7, v[36:39] offset:{L_OPL+1024}")
    bump(8, 9)
    stamp(6)
    A("s_and_b32 s73, s3, 14\ns_cmp_eq_u32 s73, 6\ns_cbranch_scc1 L_wojob")
    A("s_cmp_eq_u32 s73, 4\ns_cbranch_scc1 L_reader")
    A("s_cmp_lg_u32 s3, 8\ns_cbranch_scc1 L_fin\ns_cmp_ge_u32 s2, 64\ns_cbranch_scc1 L_fin")
    srd(48, 16, 2048); srd(52, 34, 1024); srd(56, 36, 2048)
    A("s_lshr_b32 s79, s2, 4\ns_bfe_u32 s42, s2, 0x10003")
    A("v_and_b32 v7, 3, v1\nv_lshl_add_u32 v126, v7, 2, v4\nv_lshlrev_b32 v126, 1, v126")
    A("s_lshl_b32 s43, s4, 7\ns_lshl_b32 s73, s79, 5\ns_add_u32 s43, s43, s73")
    A("buffer_load_ushort v124, v126, s[52:55], s43 offen")
    A("s_lshl_b32 s73, s42, 10\ns_add_u32 s43, s43, s73")
    A("buffer_load_ushort v125, v126, s[48:51], s43 offen")
    A("v_lshrrev_b32 v127, 2, v1\nv_lshlrev_b32 v127, 9, v127\nv_lshl_add_u32 v127, v7, 4, v127")
    A("s_lshl_b32 s42, s42, 8\ns_lshl_b32 s73, s79, 6\ns_add_u32 s42, s42, s73")
    A(f"s_add_u32 s79, s42, s78\ns_add_u32 s79, s79, {WS_MP:#x}")
    for j in range(4): A(f"v_mov_b32 v{52+j}, 0")
    def mloads():
        A("buffer_load_dwordx4 v[48:51], v127, s[44:47], s79 offen sc1")
        A("s_add_u32 s73, s79, 8192\ns_mov_b32 exec_hi, 0xffff")
        A("buffer_load_dwordx4 v[52:55], v127, s[44:47], s73 offen sc1")
        A("s_mov_b32 exec_hi, -1")
    poll(mloads, 56, 48, 8, sleep=o["sleep_h"], masked=range(4, 8))
    stamp(7)
    for e in range(4): A(f"v_add_f32 v{48+e}, v{48+e}, v{52+e}")
    finred(48)
    bf16r([48])
    A("v_lshlrev_b32 v124, 16, v124\nv_lshlrev_b32 v125, 16, v125\nv_add_f32 v48, v48, v124")
    bf16r([48])
    A("v_mul_f32 v49, 0xbfb8aa3b, v48\nv_exp_f32 v49, v49\nv_add_f32 v49, 1.0, v49\nv_rcp_f32 v49, v49\nv_mul_f32 v124, v48, v49")
    bf16r([124])
    A(f"s_add_u32 s79, s42, s78\ns_add_u32 s79, s79, {WS_SP:#x}")
    A(f"v_mov_b32 v7, {L_C2}")
    ldswait(7, 4, sleep=4, dst=8)
    def sloads():
        for t in range(4):
            if t: A(f"s_add_u32 s73, s79, {t*8192}")
            A(f"buffer_load_dwordx4 v[{48+4*t}:{51+4*t}], v127, s[44:47], {'s73' if t else 's79'} offen sc1")
    poll(sloads, 64, 48, 16, sleep=o["sleep_t"])
    stamp(8)
    for e in range(4): A(f"v_add_f32 v{48+e}, v{48+e}, v{52+e}\nv_add_f32 v{56+e}, v{56+e}, v{60+e}")
    for e in range(4): A(f"v_add_f32 v{48+e}, v{48+e}, v{56+e}")
    finred(48)
    bf16r([48])
    A("v_mul_f32 v48, v48, v124")
    bf16r([48])
    A("v_add_f32 v48, v48, v125\nv_cvt_pk_bf16_f32 v48, v48, v48")
    A("s_mov_b32 exec_lo, 0x000f000f\ns_mov_b32 exec_hi, 0x000f000f")
    A("buffer_store_short v48, v126, s[56:59], s43 offen")
    A("s_cmp_lg_u32 s2, 0\ns_cbranch_scc1 L_fin0")
    A("s_add_u32 s73, s64, 0x01010101\ns_mov_b64 exec, 1\nv_mov_b32 v49, s73\nv_mov_b32 v50, 0\nbuffer_store_dword v49, v50, s[44:47], 0 offen")
    A.label("L_fin0")
    A("s_mov_b64 exec, -1")
    A("s_branch L_fin")
    A.label("L_reader")
    A("s_and_b32 s43, s3, 1\ns_lshl_b32 s43, s43, 10\nv_add_u32 v11, s43, v3")
    A(f"s_lshl_b32 s42, s5, 11\ns_add_u32 s42, s42, s78\ns_add_u32 s42, s42, s43\ns_add_u32 s42, s42, {WS_OP:#x}")
    A(f"v_mov_b32 v7, {L_C0}\nv_lshlrev_b32 v10, 5, v6\nv_lshl_add_u32 v10, v4, 3, v10\nv_mov_b32 v12, {L_FLAG}")
    ldswait(7, 16, extra=f"ds_read_b64 v[16:17], v10 offset:{L_MLT}\nds_read_b32 v13, v12", sleep=2, dst=8)
    A("v_readfirstlane_b32 s76, v13\nv_mov_b32 v20, v16")
    rowred("v_max_f32", [20])
    A("v_and_b32 v20, 0xffffff00, v20\nv_sub_f32 v16, v16, v20\nv_exp_f32 v14, v16")
    A(f"v_mov_b32 v7, {L_C1}")
    ldswait(7, 12, extra="\n".join(f"ds_read_b128 v[{48+4*w}:{51+4*w}], v11 offset:{L_OPL+2048*w}" for w in range(4, 16)), sleep=2, dst=8)
    for w in range(4, 16):
        for e in range(4):
            op = "v_mul_f32_dpp" if w == 4 else "v_fmac_f32_dpp"
            A(f"{op} v{24+e}, v14, v{48+4*w+e} row_newbcast:{w} {DPPF}")
    stamp(7)
    A(f"v_mov_b32 v7, {L_C2}")
    A("s_setprio 2")
    ldswait(7, 4, extra="\n".join(f"ds_read_b128 v[{48+4*w}:{51+4*w}], v11 offset:{L_OPL+2048*w}" for w in range(4)), sleep=0, dst=8)
    for w in range(4):
        for e in range(4): A(f"v_fmac_f32_dpp v{24+e}, v14, v{48+4*w+e} row_newbcast:{w} {DPPF}")
    tag4(24, [24, 25, 26, 27])
    if o["local"]:
        A("s_cmp_eq_u32 s76, 2\ns_cbranch_scc0 L_opfar")
        A("buffer_store_dwordx4 v[24:27], v3, s[44:47], s42 offen")
        stamp(8)
        A("s_branch L_fin")
    A.label("L_opfar")
    A("buffer_store_dwordx4 v[24:27], v3, s[44:47], s42 offen sc1")
    stamp(8)
    A("s_branch L_fin")
    A.label("L_wojob")
    A("s_lshr_b32 s79, s5, 3\ns_and_b32 s43, s3, 1")
    A("s_lshl_b32 s73, s43, 13\nv_add_u32 v15, s73, v3")
    A("v_and_b32 v8, 7, v6\nv_lshlrev_b32 v8, 1, v8\nv_lshrrev_b32 v9, 1, v4\nv_lshrrev_b32 v10, 3, v6\nv_xor_b32 v10, v9, v10\nv_add_u32 v8, v8, v10")
    A("v_and_b32 v10, 1, v4\nv_lshl_add_u32 v8, v10, 4, v8\nv_lshlrev_b32 v8, 6, v8")
    A("v_lshl_add_u32 v11, v10, 4, v9\nv_lshlrev_b32 v11, 11, v11\nv_lshl_add_u32 v11, v6, 4, v11")
    A("v_lshlrev_b32 v12, 7, v10\nv_lshl_add_u32 v12, v6, 3, v12\nv_lshl_add_u32 v12, v9, 2, v12")
    A("v_bfe_u32 v13, v1, 2, 1\nv_lshlrev_b32 v13, 7, v13\nv_lshl_add_u32 v13, v4, 4, v13")
    A("s_lshl_b32 s73, s3, 8\nv_add_u32 v12, s73, v12\nv_add_u32 v13, s73, v13")
    A("s_lshl_b32 s76, s4, 3\ns_lshl_b32 s73, s79, 1\ns_add_u32 s76, s76, s73\ns_add_u32 s76, s76, s43")
    A(f"s_lshl_b32 s76, s76, 9\ns_add_u32 s76, s76, s7\ns_add_u32 s76, s76, {WS_SP:#x}")
    A(f"v_mov_b32 v7, {L_C0}")
    ldswait(7, 16, sleep=4, dst=9)
    for k in range(8): A(f"ds_read_b128 v[{80+4*k}:{83+4*k}], v15 offset:{L_WOT+1024*k}")
    if o["ml_delay"]: A(f"s_sleep {o['ml_delay']}")
    A("s_setprio 2")
    A(f"s_lshl_b32 s73, s79, 4\ns_add_u32 s42, s78, s73\ns_add_u32 s42, s42, {WS_ML:#x}")
    poll(lambda: A("buffer_load_dwordx4 v[16:19], v8, s[44:47], s42 offen sc1"), 20, 16, 4, sleep=o["sleep_ml"])
    A("v_mov_b32 v20, v16")
    rowred("v_max_f32", [20])
    A("v_sub_f32 v16, v16, v20\nv_exp_f32 v16, v16\nv_mul_f32 v17, v16, v17")
    rowred("v_add_f32", [17])
    A("v_rcp_f32 v17, v17\nv_mul_f32 v14, v16, v17")
    A(f"s_lshl_b32 s73, s43, 10\ns_add_u32 s42, s78, s73\ns_lshl_b32 s73, s79, 8\ns_add_u32 s42, s42, s73\ns_add_u32 s42, s42, {WS_OP:#x}")
    for t in range(1, 8): A(f"s_add_u32 s{55+t}, s42, {t*4096}")
    stamp(7)
    A(f"v_mov_b32 v7, {L_C2}")
    ldswait(7, 4, sleep=1, dst=9)
    def oloads():
        for t in range(8):
            A(f"buffer_load_dwordx4 v[{48+4*t}:{51+4*t}], v11, s[44:47], {f's{55+t}' if t else 's42'} offen sc1")
    poll(oloads, 20, 48, 32, sleep=o["sleep_t"])
    stamp(8)
    for t in range(8):
        for e in range(4):
            op = "v_mul_f32_dpp" if t == 0 else "v_fmac_f32_dpp"
            A(f"{op} v{16+e}, v14, v{48+4*t+e} row_newbcast:{t} {DPPF}")
    A("v_permlane32_swap_b32 v16, v18\nv_permlane32_swap_b32 v17, v19\nv_add_f32 v16, v16, v18\nv_add_f32 v17, v17, v19\nv_cvt_pk_bf16_f32 v16, v16, v17")
    A(f"ds_write_b32 v12, v16 offset:{L_SCR}")
    A(f"ds_read_b128 v[20:23], v13 offset:{L_SCR}\nds_read_b128 v[24:27], v13 offset:{L_SCR+64}")
    A("s_waitcnt lgkmcnt(0)")
    tile_mfma(28, 20, 80, True)
    tile_mfma(28, 24, 96, False)
    publish512(28, 16, 76)
    A.label("L_fin")
    if debug:
        stamp(9)
        A("s_waitcnt lgkmcnt(0)")
        for k in range(10): A(f"v_mov_b32 v{16+k}, s{80+2*k}")
        A("s_getreg_b32 s73, hwreg(HW_REG_XCC_ID)\nv_mov_b32 v26, s73\nv_mov_b32 v27, s75")
        A(f"s_lshl_b32 s73, s2, 4\ns_add_u32 s73, s73, s3\ns_lshl_b32 s73, s73, 6\ns_add_u32 s73, s73, {WS_STAMP:#x}")
        A("v_mov_b32 v7, 0\ns_mov_b64 exec, 1")
        for q in range(3): A(f"buffer_store_dwordx4 v[{16+4*q}:{19+4*q}], v7, s[44:47], s73 offen offset:{16*q}")
    A.label("L_end")
    A("s_endpgm")
    A('.section .rodata,"a"\n.p2align 6')
    A(f".amdhsa_kernel {NAME}_kernel\n.amdhsa_next_free_vgpr 128\n.amdhsa_next_free_sgpr 102\n.amdhsa_accum_offset 128")
    A(".amdhsa_group_segment_fixed_size 0\n.amdhsa_kernarg_size 104\n.amdhsa_user_sgpr_count 2\n.amdhsa_user_sgpr_kernarg_segment_ptr 1\n.amdhsa_system_sgpr_workgroup_id_x 1\n.end_amdhsa_kernel")
    txt = A.finish()
    if o["ldnt"]:
        txt = "\n".join((l + " nt" if "buffer_load" in l and " nt" not in l else l) for l in txt.split("\n"))
    return txt

if __name__ == "__main__":
    import json
    name = sys.argv[1] if len(sys.argv) > 1 else "k8"
    opts = json.loads(sys.argv[2]) if len(sys.argv) > 2 else {}
    open(name + ".s", "w").write(gen(False, opts))
    open(name + "d.s", "w").write(gen(True, opts))
```

```python
import sys
from asmlib import Asm
NAME = "recurrent_scan__gqa_block_cached__mixer_channel_mlp__decode"

WS_XI = 0x400
WS_ML = 0x800
WS_QX = 0x4000
WS_HX = 0x8000
WS_MP = 0xc000
WS_OP = 0x10000
WS_SP = 0x20000
WS_LOC = 0x30000
WS_STAMP = 0x8000000
WS_SIZE = 0x10000000
L_QF = 0
L_FLAG = 1024
L_C0 = 1028
L_C1 = 1032
L_C2 = 1036
L_C3 = 1040
L_C4 = 1100
L_QP = 1048
L_C5 = 1052
L_HR = 1056
L_C6 = 1060
L_MLT = 1536
L_XS = 2048
L_SCR = 6144
L_OPL = 10240
L_WOT = L_OPL + 16 * 2048
L_BT = L_WOT
LDS_BYTES = L_WOT + 16384

DPPF = "row_mask:0xf bank_mask:0xf"
TIMEOUT = 200000
N = None

def gen(debug=False, opts=None):
    o = dict(sleep_q=8, sleep_h=8, sleep_t=0, sleep_ml=2, Spos=12,
             wa=[N, N, 1, 1, 1, 1, 1, 1, 1, 1, 1, 1, N, N, N, N], wb=None,
             W0k=4, W23k=4, Wwo=8, SL=0x40000, kvmap=2, thr=(12, 12, 12, 12), local=True, xmask=0x1f800, touch=True,
             rot=3, pk=True, nt=True, codepf=2, wo2late=False, wo3late=False, Blate=False, earlybar=False, qdelay=0, hdelay=0, WBk=4, xm=0x187800, qfirst=0, W2k=8, xihint=False, woend=2, wop=1, Bend=4, wo4=True, Bc3=12, woc3=0, mlreader=True, fpar=1, mpearly=4, hpre=True, stnt=False)
    o.update(opts or {})
    if o["wb"] is None: o["wb"] = o["wa"]
    NT = " nt" if o["nt"] else ""
    abl = o.get("abl", "")
    A = Asm()
    uid = [0]
    def lab(s):
        uid[0] += 1
        return f"L_{s}_{uid[0]}"
    def stamp(k, early=False):
        if o.get("dbgstart") and k in (3, 5, 7, 8) and not early: return
        if early and not o.get("dbgstart"): return
        if debug: A(f"s_memrealtime s[{80+2*k}:{81+2*k}]")
    def srd(d, p, size):
        A(f"s_mov_b32 s{d}, s{p}\ns_mov_b32 s{d+1}, s{p+1}\ns_mov_b32 s{d+2}, {size:#x}\ns_mov_b32 s{d+3}, 0x00020000")
    def tags():
        A("s_add_u32 s65, s64, 0x01010101\nv_and_b32 v5, 3, v1\nv_lshlrev_b32 v5, 3, v5\nv_min_u32 v5, 20, v5\nv_lshrrev_b32_e64 v5, v5, s65\nv_and_b32 v5, s66, v5")
    def check(acc, base, nl, full=()):
        r = [base + 4 * i + 3 for i in range(nl)]
        for x in r: A(f"v_xor_b32 v{x}, v5, v{x}")
        if nl == 1: A(f"v_and_b32 v{acc}, s66, v{r[0]}")
        else:
            if nl == 2: A(f"v_or_b32 v{acc}, v{r[0]}, v{r[1]}"); i = 2
            else: A(f"v_or3_b32 v{acc}, v{r[0]}, v{r[1]}, v{r[2]}"); i = 3
            while i < nl:
                if i + 1 < nl: A(f"v_or3_b32 v{acc}, v{acc}, v{r[i]}, v{r[i+1]}"); i += 2
                else: A(f"v_or_b32 v{acc}, v{acc}, v{r[i]}"); i += 1
            A(f"v_and_b32 v{acc}, s66, v{acc}")
        for x in full: A(f"v_bitop3_b32 v{acc}, v{x}, s65, v{acc} bitop3:0xbe")
        A(f"v_cmp_ne_u32 vcc, 0, v{acc}")
    def poll(loads, chk, sleep=1):
        l0 = lab("poll"); l1 = lab("pok")
        A(f"s_mov_b32 s75, {TIMEOUT}")
        A.label(l0)
        loads()
        A("s_waitcnt vmcnt(0)")
        chk()
        A(f"s_cbranch_vccz {l1}")
        A(f"s_sub_u32 s75, s75, 1\ns_cmp_eq_u32 s75, 0\ns_cbranch_scc1 {l1}")
        if sleep: A(f"s_sleep {sleep}")
        A(f"s_branch {l0}")
        A.label(l1)
    def rowred(op, regs):
        for sh in (8, 4, 2, 1):
            for r in regs: A(f"{op}_dpp v{r}, v{r}, v{r} row_ror:{sh} {DPPF}")
    def xred(op, regs, tmps, which=(16, 32)):
        for w in which:
            for r, t in zip(regs, tmps): A(f"v_mov_b32 v{t}, v{r}")
            for r, t in zip(regs, tmps): A(f"v_permlane{w}_swap_b32 v{r}, v{t}")
            for r, t in zip(regs, tmps): A(f"{op} v{r}, v{r}, v{t}")
    def unpack(dst, src, n):
        for i in range(n):
            A(f"v_lshlrev_b32 v{dst+2*i}, 16, v{src+i}")
            A(f"v_and_b32 v{dst+2*i+1}, s77, v{src+i}")
    def layernorm(xp, u, t):
        unpack(u, xp, 8)
        for b in range(2):
            A(f"v_add_f32 v{t+b}, v{u+8*b}, v{u+8*b+1}")
            for i in range(2, 8): A(f"v_add_f32 v{t+b}, v{t+b}, v{u+8*b+i}")
        rowred("v_add_f32", [t, t+1])
        xred("v_add_f32", [t, t+1], [t+2, t+3])
        A(f"v_mul_f32 v{t}, 0x3b000000, v{t}\nv_mul_f32 v{t+1}, 0x3b000000, v{t+1}")
        for b in range(2):
            for i in range(8):
                A(f"v_sub_f32 v{t+4}, v{u+8*b+i}, v{t+b}")
                if i == 0: A(f"v_mul_f32 v{t+2+b}, v{t+4}, v{t+4}")
                else: A(f"v_fmac_f32 v{t+2+b}, v{t+4}, v{t+4}")
        rowred("v_add_f32", [t+2, t+3])
        xred("v_add_f32", [t+2, t+3], [t+4, t+5])
        A(f"v_mul_f32 v{t+2}, 0x3b000000, v{t+2}\nv_mul_f32 v{t+3}, 0x3b000000, v{t+3}")
        A(f"v_cvt_pk_bf16_f32 v{t+4}, v{t}, v{t+1}")
        A(f"v_cvt_pk_bf16_f32 v{t+5}, v{t+2}, v{t+3}")
        unpack(t, t+4, 2)
        A(f"v_add_f32 v{t+2}, 0x3727c5ac, v{t+2}\nv_add_f32 v{t+3}, 0x3727c5ac, v{t+3}")
        A(f"v_cvt_pk_bf16_f32 v{t+5}, v{t+2}, v{t+3}")
        unpack(t+2, t+5, 1)
        A(f"v_sqrt_f32 v{t+2}, v{t+2}\nv_sqrt_f32 v{t+3}, v{t+3}")
        A(f"v_cvt_pk_bf16_f32 v{t+5}, v{t+2}, v{t+3}")
        unpack(t+2, t+5, 1)
        A(f"v_rcp_f32 v{t+2}, v{t+2}\nv_rcp_f32 v{t+3}, v{t+3}")
        for b in range(2):
            for i in range(8): A(f"v_sub_f32 v{u+8*b+i}, v{u+8*b+i}, v{t+b}")
        for i in range(8): A(f"v_cvt_pk_bf16_f32 v{xp+i}, v{u+2*i}, v{u+2*i+1}")
        unpack(u, xp, 8)
        for b in range(2):
            for i in range(8): A(f"v_mul_f32 v{u+8*b+i}, v{u+8*b+i}, v{t+2+b}")
        for i in range(8): A(f"v_cvt_pk_bf16_f32 v{xp+i}, v{u+2*i}, v{u+2*i+1}")
    def tile_perm(src, ks, T):
        for j in range(2):
            for p in range(4):
                a = src + (ks * 8 + 2 * p) * 2 + j; b = src + (ks * 8 + 2 * p + 1) * 2 + j
                A(f"v_perm_b32 v{T+4*(2*j)+p}, v{b}, v{a}, s69")
                A(f"v_perm_b32 v{T+4*(2*j+1)+p}, v{b}, v{a}, s70")
    def tile_mfma(D, Af, T, first):
        for d in range(4):
            c = "0" if first else f"v[{D+4*d}:{D+4*d+3}]"
            A(f"v_mfma_f32_16x16x32_bf16 v[{D+4*d}:{D+4*d+3}], v[{Af}:{Af+3}], v[{T+4*d}:{T+4*d+3}], {c}")
    def publish512(D, soff):
        A(f"v_mov_b32 v{D+1}, v{D+4}\nv_mov_b32 v{D+2}, v{D+8}\nv_bfi_b32 v{D+3}, s66, v5, v{D+12}")
        A("s_mov_b32 exec_hi, 0")
        A(f"buffer_store_dwordx4 v[{D}:{D+3}], v3, s[44:47], s{soff} offen sc1")
        A("s_mov_b32 exec_hi, -1")
    def bf16r(regs):
        for r in regs: A(f"v_cvt_pk_bf16_f32 v{r}, v{r}, v{r}")
        for r in regs: A(f"v_and_b32 v{r}, s77, v{r}")
    def ldswait(addr_reg, target, extra="", sleep=1, dst=None):
        l0 = lab("lw"); l1 = lab("lok")
        A(f"s_mov_b32 s75, {TIMEOUT*4}")
        A.label(l0)
        A(f"ds_read_b32 v{dst}, v{addr_reg}")
        A(extra)
        A("s_waitcnt lgkmcnt(0)")
        A(f"v_readfirstlane_b32 s73, v{dst}\ns_cmp_ge_u32 s73, {target}\ns_cbranch_scc1 {l1}")
        A(f"s_sub_u32 s75, s75, 1\ns_cmp_eq_u32 s75, 0\ns_cbranch_scc1 {l1}")
        if sleep: A(f"s_sleep {sleep}")
        A(f"s_branch {l0}")
        A.label(l1)
    def bump(addr_reg, one_reg):
        A(f"s_mov_b64 exec, 1\nds_add_u32 v{addr_reg}, v{one_reg}\ns_mov_b64 exec, -1")
    def finred(a):
        A(f"v_permlane32_swap_b32 v{a}, v{a+2}\nv_permlane32_swap_b32 v{a+1}, v{a+3}\nv_add_f32 v{a}, v{a}, v{a+2}\nv_add_f32 v{a+1}, v{a+1}, v{a+3}")
        A(f"v_permlane16_swap_b32 v{a}, v{a+1}\nv_add_f32 v{a}, v{a}, v{a+1}")
        A(f"v_add_f32_dpp v{a}, v{a}, v{a} row_ror:8 {DPPF}\nv_add_f32_dpp v{a}, v{a}, v{a} row_ror:4 {DPPF}")
    def wsum(acc, data, idx, F):
        for k, i in enumerate(idx):
            for h in range(2):
                d = data + 4 * i + 2 * h; a = acc + 2 * h; f = F[i]; fe = f & ~1
                sel = f & 1
                if k == 0 and idx[0] == idx_first[0]:
                    A(f"v_pk_mul_f32 v[{a}:{a+1}], v[{d}:{d+1}], v[{fe}:{fe+1}] op_sel:[0,{sel}] op_sel_hi:[1,{sel}]")
                else:
                    A(f"v_pk_fma_f32 v[{a}:{a+1}], v[{d}:{d+1}], v[{fe}:{fe+1}], v[{a}:{a+1}] op_sel:[0,{sel},0] op_sel_hi:[1,{sel},1]")
    idx_first = [None]
    BS = ["s96", "s97", "s98", "s99"] if not debug else ["s100", "s101", "s72", "s74"]
    def kload(t): A(f"buffer_load_dwordx4 v[{16+4*t}:{19+4*t}], v2, s[8:11], {BS[t>>1]} offen offset:{(t&1)*1024}{NT}")
    def vload(t): A(f"buffer_load_dwordx4 v[{48+4*t}:{51+4*t}], v3, s[12:15], {BS[t>>1]} offen offset:{(t&1)*1024}{NT}")
    def svc_k(W):
        for t in range(8):
            if t >= W: A(f"s_waitcnt vmcnt({W-1})")
            kload(t)
    def stream_issue(n0, n1):
        ev = o.get("evsites", [4, 7, 9])
        evt = o.get("evtab")
        for n in range(n0, n1):
            a = o["wa"][n]
            bo = o.get("boost")
            if a is not None and bo and bo[0] <= n < bo[1]:
                l = lab("bo")
                A(f"s_waitcnt vmcnt({a+1})\ns_cbranch_scc1 {l}\ns_waitcnt vmcnt({a})\n{l}:")
            elif a is not None: A(f"s_waitcnt vmcnt({a})")
            if evt:
                for k, e in enumerate(ev):
                    if n in (e, e + 1) and max(evt) > k:
                        l = lab("sk")
                        A(f"s_cmp_le_u32 s62, {k}\ns_cbranch_scc1 {l}\ns_waitcnt vmcnt(0)\n{l}:")
            (kload if n < 8 else vload)(n % 8)
    def wo_cg(dst):
        A(f"s_lshl_b32 {dst}, s43, 2\ns_add_u32 {dst}, {dst}, s5\ns_add_u32 {dst}, {dst}, {o['rot']}\ns_and_b32 {dst}, {dst}, 7")
    def perm8(src, T):
        for j in range(4):
            for p in range(4):
                a = src + 8 * p + j; b = a + 4
                A(f"v_perm_b32 v{T+8*j+p}, v{b}, v{a}, s69\nv_perm_b32 v{T+8*j+4+p}, v{b}, v{a}, s70")
    def wotile(mid=None):
        srd(52, 24, 0x400000)
        A("v_bfe_u32 v14, v1, 3, 1\nv_and_b32 v13, 7, v1\nv_lshlrev_b32 v15, 14, v4\nv_lshl_add_u32 v15, v14, 16, v15\nv_lshl_add_u32 v15, v13, 4, v15")
        A("s_lshr_b32 s79, s5, 3\ns_and_b32 s43, s3, 1\ns_lshl_b32 s42, s4, 19\ns_lshl_b32 s73, s79, 17\ns_add_u32 s42, s42, s73\ns_lshl_b32 s73, s43, 12\ns_add_u32 s42, s42, s73")
        wo_cg("s73")
        A("s_lshl_b32 s73, s73, 7\ns_add_u32 s42, s42, s73\ns_add_u32 s73, s42, 0x2000")
        if mid:
            A(f"s_mov_b32 s7, s73\nv_mov_b32 v7, {L_C5}")
            ldswait(7, o["woend"], sleep=1, dst=9)
            A("s_mov_b32 s73, s7")
            stamp(1)
        for i in range(8):
            if i >= o["Wwo"]: A(f"s_waitcnt vmcnt({o['Wwo']-1})")
            A(f"buffer_load_dwordx4 v[{48+4*i}:{51+4*i}], v15, s[52:55], {'s73' if i >= 4 else 's42'} offen offset:{(i&3)*1024}{NT}")
        A("v_lshlrev_b32 v15, 12, v14\nv_lshl_add_u32 v15, v4, 8, v15\nv_lshl_add_u32 v15, v13, 5, v15")
        A(f"s_lshl_b32 s73, s43, 13\nv_add_u32 v15, s73, v15\nv_mov_b32 v13, {L_C4}\nv_mov_b32 v14, 1")
        if mid: mid()
        else: A("s_waitcnt vmcnt(0)")
        perm8(48, 80)
        for d in range(8): A(f"ds_write_b128 v15, v[{80+4*d}:{83+4*d}] offset:{L_WOT+1024*(d&3)+16*(d>>2)}")
        if not mid:
            bump(13, 14)
            A("s_waitcnt lgkmcnt(0)")
    def jobid(none, second):
        cnt = o.get("rgcnt", [4, 2, 2, 2, 2, 0, 2, 0])
        assert sum(cnt) == 14
        base = [sum(cnt[:i]) for i in range(8)]
        tb = sum(min(b, 15) << 4 * i for i, b in enumerate(base)); tc = sum(c << 4 * i for i, c in enumerate(cnt))
        A(f"s_bitcmp{0 if second else 1}_b32 s5, 3\ns_cselect_b32 s7, 2, 0\ns_lshr_b32 s73, s5, 4\ns_add_u32 s7, s7, s73")
        A(f"s_lshl_b32 s73, s4, 2\ns_lshr_b32 s79, {tc:#x}, s73\ns_and_b32 s79, s79, 15\ns_cmp_ge_u32 s7, s79\ns_cbranch_scc1 {none}")
        A(f"s_lshr_b32 s79, {tb:#x}, s73\ns_and_b32 s79, s79, 15\ns_add_u32 s79, s79, s7")
    A(f"; @launch grid=(256,1,1) block=(1024,1,1) lds={LDS_BYTES}")
    A('.amdgcn_target "amdgcn-amd-amdhsa--gfx950"\n.text')
    A(f".globl {NAME}_kernel\n.p2align 8\n.type {NAME}_kernel,@function\n{NAME}_kernel:")
    A("s_load_dwordx16 s[16:31], s[0:1], 0\ns_load_dwordx8 s[32:39], s[0:1], 64\ns_load_dwordx2 s[40:41], s[0:1], 96")
    A("s_cmp_ge_u32 s2, 256\ns_cbranch_scc1 L_end")
    stamp(0)
    if o.get("dbgtime"): A("s_memrealtime s[80:81]")
    if o["codepf"]:
        if o["codepf"] == 2:
            A("v_cmp_gt_u32 vcc, 0x80, v0\ns_cbranch_vccz L_nopf\ns_getpc_b64 s[42:43]\nL_pc:\nv_lshlrev_b32 v4, 7, v0\nv_min_u32 v4, L_codeend-L_pc-4, v4\nglobal_load_dword v127, v4, s[42:43]\nL_nopf:")
        else: A("s_getpc_b64 s[42:43]\nL_pc:\nv_lshlrev_b32 v4, 4, v0\nv_min_u32 v4, L_codeend-L_pc-4, v4\nglobal_load_dword v127, v4, s[42:43]")
    A("v_lshrrev_b32 v4, 6, v0\nv_and_b32 v1, 63, v0\nv_readfirstlane_b32 s3, v4")
    A("s_and_b32 s75, s2, 15\ns_lshl_b32 s75, s75, 21\ns_lshr_b32 s73, s2, 4\ns_lshl_b32 s73, s73, 15\ns_or_b32 s75, s75, s73")
    A(f"s_mul_i32 s79, s2, 0x9e3779b1\ns_lshr_b32 s79, s79, 9\ns_and_b32 s79, s79, {o['xm']:#x}\ns_or_b32 s75, s75, s79")
    A("v_bfe_u32 v2, v1, 2, 2\nv_lshlrev_b32 v2, 8, v2\nv_lshrrev_b32 v4, 4, v1\nv_lshl_add_u32 v2, v4, 6, v2")
    A("v_and_b32 v6, 3, v1\nv_lshl_add_u32 v2, v6, 4, v2")
    A("s_mov_b32 s10, 0x2000000\ns_mov_b32 s11, 0x00020000")
    A("s_sub_u32 s76, s3, 4\ns_cbranch_scc1 L_svc")
    A(f"s_lshl_b32 s73, s76, 11\ns_xor_b32 {BS[0]}, s75, s73")
    A("s_waitcnt lgkmcnt(0)")
    A("s_mov_b32 s8, s18\ns_mov_b32 s9, s19")
    nfirst = 2 if o["wa"][1] is None else 1
    if o.get("bar0", 0) < 0: nfirst = 0
    if "nfirst" in o: nfirst = o["nfirst"]
    for n in range(nfirst): kload(n)
    stamp(3, True)
    def common(step, first):
        for k in range(first, 4):
            if step == 12 and o.get("map2") and k >= 2:
                A("s_lshl_b32 s76, s3, 1\ns_add_u32 s76, s76, 16" if k == 2 else "s_add_u32 s76, s76, 1")
            elif k: A(f"s_add_u32 s76, s76, {step}")
            A(f"s_and_b32 s73, s76, 15\ns_lshl_b32 s73, s73, 11\ns_lshr_b32 s42, s76, 4\ns_lshl_b32 s42, s42, 19\ns_or_b32 s73, s73, s42\ns_xor_b32 {BS[k]}, s75, s73")
        A("s_load_dword s64, s[40:41], 0")
        if debug:
            for k in range(1, 10):
                if not (o.get("dbgstart") and k in (3, 5, 7)): A(f"s_mov_b64 s[{80+2*k}:{81+2*k}], 0")
        A("s_mov_b32 s12, s20\ns_mov_b32 s13, s21\ns_mov_b32 s14, 0x2000000\ns_mov_b32 s15, 0x00020000")
        A(f"s_mov_b32 s44, s40\ns_mov_b32 s45, s41\ns_mov_b32 s46, {WS_SIZE:#x}\ns_mov_b32 s47, 0x00020000")
        A("s_mov_b32 s69, 0x05040100\ns_mov_b32 s70, 0x07060302\ns_mov_b32 s71, 0x3e0293ee\ns_mov_b32 s77, 0xffff0000\ns_movk_i32 s66, 0xfff")
        A(f"s_mul_i32 s78, s4, {o['SL']:#x}\ns_getreg_b32 s67, hwreg(HW_REG_XCC_ID, 0, 4)")
    A("s_and_b32 s4, s2, 7\ns_lshr_b32 s5, s2, 3\nv_lshlrev_b32 v3, 4, v1\nv_and_b32 v6, 15, v1")
    common(12, 1)
    if o.get("evtab"): A(f"s_lshl_b32 s73, s67, 2\ns_lshr_b32 s62, {sum(c << 4 * i for i, c in enumerate(o['evtab'])):#x}, s73\ns_and_b32 s62, s62, 15")
    if o.get("boost"): A("s_and_b32 s73, s5, 7\ns_cmp_eq_u32 s73, 3")
    A("s_barrier")
    Spos = o["Spos"]
    stream_issue(nfirst, Spos)
    if Spos == 16:
        A(f"v_mov_b32 v8, {L_C3}\nv_mov_b32 v9, 1")
        bump(8, 9)
        stamp(3)
    A(f"s_waitcnt vmcnt({Spos-8})")
    A.label("L_sphase")
    stamp(4)
    A(f"v_mov_b32 v7, {L_FLAG}")
    ldswait(7, 1, extra=f"ds_read_b128 v[8:11], v2 offset:{L_QF}", sleep=2, dst=12)
    for t in range(8):
        A(f"v_mfma_f32_16x16x32_bf16 v[{80+4*t}:{83+4*t}], v[{16+4*t}:{19+4*t}], v[8:11], 0")
    A("s_mov_b32 s68, s73")
    tags()
    A("v_lshlrev_b32 v7, 1, v1\ns_lshl_b32 s73, s3, 5\nv_add_u32 v7, s73, v7")
    A(f"v_mov_b32 v8, {L_C0}\nv_mov_b32 v9, 1")
    for t in range(8): A(f"v_mov_b32_dpp v{112+t}, v{80+4*t} quad_perm:[0,0,0,0] {DPPF}")
    for s in range(1, 4):
        for t in range(8): A(f"v_add_f32_dpp v{112+t}, v{80+4*t+s}, v{112+t} quad_perm:[{s},{s},{s},{s}] {DPPF}")
    A("v_max3_f32 v120, v112, v113, v114\nv_max3_f32 v121, v115, v116, v117\nv_max3_f32 v120, v120, v118, v119\nv_max_f32 v120, v120, v121")
    xred("v_max_f32", [120], [121])
    A("v_mul_f32 v120, s71, v120")
    for t in range(8): A(f"v_fma_f32 v{112+t}, v{112+t}, s71, -v120")
    for t in range(8): A(f"v_exp_f32 v{112+t}, v{112+t}")
    A("v_add_f32 v121, v112, v113\nv_add_f32 v122, v114, v115\nv_add_f32 v123, v116, v117\nv_add_f32 v124, v118, v119")
    A("v_add_f32 v121, v121, v122\nv_add_f32 v123, v123, v124\nv_add_f32 v121, v121, v123")
    xred("v_add_f32", [121], [122])
    A("s_mov_b64 exec, 0x1111")
    A(f"ds_write_b64 v7, v[120:121] offset:{L_MLT}")
    bump(8, 9)
    for p in range(4): A(f"v_cvt_pk_bf16_f32 v{124+p}, v{112+2*p}, v{113+2*p}")
    stamp(5)
    A("s_cmp_lt_u32 s3, 4\ns_cbranch_scc1 L_svcmid")
    if Spos < 16:
        stream_issue(Spos, 16)
        A(f"v_mov_b32 v8, {L_C3}")
        bump(8, 9)
        stamp(3)
    A(f"v_mov_b32 v8, {L_C1}")
    A.label("L_pphase")
    A("v_and_b32 v0, 3, v1")
    for j in range(4): A(f"v_cmp_eq_u32 s[{48+2*j}:{49+2*j}], {j}, v0")
    for j in range(4):
        for p in range(4): A(f"v_cndmask_b32 v{16+4*j+p}, 0, v{124+p}, s[{48+2*j}:{49+2*j}]")
    A("s_lshl_b32 s73, s3, 11\nv_add_u32 v7, s73, v3")
    for p in range(4):
        A(f"s_waitcnt vmcnt({6-2*p})")
        if o.get("wop") == p:
            A(f"v_add_u32 v10, {L_C4-L_C2}, v8")
            bump(10, 9)
        if p < 3 or not o.get("fast", True):
            for j in range(4):
                a = 48 + 8 * p + j; b = a + 4
                A(f"v_perm_b32 v{80+8*j+p}, v{b}, v{a}, s69\nv_perm_b32 v{84+8*j+p}, v{b}, v{a}, s70")
    def pvm(d):
        hf, j = d >> 2, d & 3
        c = "0" if j == 0 else f"v[{32+4*hf}:{35+4*hf}]"
        A(f"v_mfma_f32_16x16x32_bf16 v[{32+4*hf}:{35+4*hf}], v[{16+4*j}:{19+4*j}], v[{80+4*d}:{83+4*d}], {c}")
    if o.get("fast", True):
        pm = lambda d: A(f"v_perm_b32 v{83+4*d}, v{76+(d>>1)}, v{72+(d>>1)}, s{69+(d&1)}")
        pm(0); pm(1); pm(2)
        for d in range(8):
            pvm(d)
            if d + 3 < 8: pm(d + 3)
        A(f"ds_write_b128 v7, v[32:35] offset:{L_OPL}\nds_write_b128 v7, v[36:39] offset:{L_OPL+1024}")
    else:
        for j in range(4):
            for hf in range(2): pvm(4 * hf + j)
        A(f"ds_write_b128 v7, v[32:35] offset:{L_OPL}\nds_write_b128 v7, v[36:39] offset:{L_OPL+1024}")
    bump(8, 9)
    stamp(6)
    A("s_and_b32 s73, s3, 14\ns_cmp_eq_u32 s73, 6\ns_cbranch_scc1 L_wojob")
    A("s_cmp_eq_u32 s73, 4\ns_cbranch_scc1 L_reader")
    A(f"s_cmp_lg_u32 s3, 8\ns_cbranch_scc1 L_fin\ns_bitcmp{1 - o.get('fpar', o.get('apar', 0))}_b32 s2, 0\ns_cbranch_scc1 L_fin\ns_cmp_ge_u32 s2, 128\ns_cbranch_scc1 L_fin")
    srd(48, 16, 2048); srd(52, 34, 1024); srd(56, 36, 2048)
    A(f"s_lshr_b32 s79, s2, 5\ns_bfe_u32 s42, s2, 0x10004\ns_bfe_u32 s4, s2, 0x30001\ns_mul_i32 s78, s4, {o['SL']:#x}")
    A("v_lshl_add_u32 v126, v0, 2, v4\nv_lshlrev_b32 v126, 1, v126")
    A("s_lshl_b32 s43, s4, 7\ns_lshl_b32 s73, s79, 5\ns_add_u32 s43, s43, s73")
    A("buffer_load_ushort v124, v126, s[52:55], s43 offen")
    A("s_lshl_b32 s73, s42, 10\ns_add_u32 s43, s43, s73")
    A("buffer_load_ushort v125, v126, s[48:51], s43 offen")
    if o.get("outtouch"): A("buffer_load_ushort v123, v126, s[56:59], s43 offen")
    A("v_lshrrev_b32 v127, 2, v1\nv_lshlrev_b32 v127, 9, v127\nv_lshl_add_u32 v127, v0, 4, v127")
    A("s_lshl_b32 s42, s42, 8\ns_lshl_b32 s73, s79, 6\ns_add_u32 s42, s42, s73\ns_add_u32 s42, s42, s78")
    A(f"s_add_u32 s79, s42, {WS_MP:#x}")
    for j in range(4): A(f"v_mov_b32 v{16+j}, 0")
    for t in range(4): A(f"s_add_u32 s{60+t}, s42, {WS_SP+t*8192:#x}")
    mpload = lambda: A("s_mov_b32 exec_hi, 0xffffff\nbuffer_load_dwordx4 v[16:19], v127, s[44:47], s79 offen sc1\ns_mov_b32 exec_hi, -1")
    A("s_mov_b32 s7, 0")
    if "m" in abl: A("s_mov_b32 s7, 1\ns_branch L_fwait")
    if o.get("mpearly"):
        A(f"v_mov_b32 v7, {L_C5}")
        ldswait(7, o["mpearly"], sleep=2, dst=8)
        mpload()
    A("s_waitcnt vmcnt(0)\nv_lshlrev_b32 v124, 16, v124\nv_lshlrev_b32 v125, 16, v125")
    if o.get("mpearly"): A("s_mov_b32 s7, 2\ns_branch L_fmp")
    A.label("L_fwait")
    A(f"v_mov_b32 v7, {L_C6}")
    ldswait(7, 2, sleep=1, dst=8)
    if o.get("fdelay"): A(f"s_sleep {o['fdelay']}")
    A(f"s_mov_b32 s75, {TIMEOUT}\ns_setprio 2")
    A.label("L_fpoll")
    A("s_cmp_eq_u32 s7, 1\ns_cbranch_scc1 L_fnomp")
    mpload()
    A.label("L_fnomp")
    for t in range(4): A(f"buffer_load_dwordx4 v[{48+4*t}:{51+4*t}], v127, s[44:47], s{60+t} offen sc1")
    A("s_cbranch_scc1 L_fchk")
    A("s_waitcnt vmcnt(4)")
    A.label("L_fmp")
    A("s_mov_b32 exec_hi, 0xffffff")
    check(20, 16, 1)
    A("s_mov_b32 exec_hi, -1\ns_cbranch_vccz L_fg")
    A("s_cmp_eq_u32 s7, 2\ns_mov_b32 s7, 0\ns_cbranch_scc1 L_fwait\ns_branch L_fretry")
    A.label("L_fg")
    stamp(7)
    finred(16)
    bf16r([16])
    A("v_add_f32 v16, v16, v124")
    bf16r([16])
    A("v_mul_f32 v17, 0xbfb8aa3b, v16\nv_exp_f32 v17, v17\nv_add_f32 v17, 1.0, v17\nv_rcp_f32 v17, v17\nv_mul_f32 v124, v16, v17")
    bf16r([124])
    A("s_cmp_eq_u32 s7, 2\ns_mov_b32 s7, 1\ns_cbranch_scc1 L_fwait")
    A.label("L_fchk")
    if o.get("fast", True):
        for t in range(4):
            A(f"s_waitcnt vmcnt({3-t})\nv_xor_b32 v{51+4*t}, v5, v{51+4*t}")
            if t == 1: A("v_or_b32 v64, v51, v55")
            if t == 3: A("v_or3_b32 v64, v64, v59, v63\nv_and_b32 v64, s66, v64\nv_cmp_ne_u32 vcc, 0, v64")
            if t:
                for h in range(2): A(f"v_pk_add_f32 v[{48+2*h}:{49+2*h}], v[{48+2*h}:{49+2*h}], v[{48+4*t+2*h}:{49+4*t+2*h}]")
    else:
        A("s_waitcnt vmcnt(0)")
        check(64, 48, 4)
    A("s_cbranch_vccz L_fok")
    A.label("L_fretry")
    A("s_waitcnt vmcnt(0)")
    if o.get("sleep_f"): A(f"s_sleep {o['sleep_f']}")
    A("s_sub_u32 s75, s75, 1\ns_cmp_lg_u32 s75, 0\ns_cbranch_scc1 L_fpoll")
    A.label("L_fok")
    stamp(8)
    if not o.get("fast", True):
        for h in range(2): A(f"v_pk_add_f32 v[{48+2*h}:{49+2*h}], v[{48+2*h}:{49+2*h}], v[{52+2*h}:{53+2*h}]\nv_pk_add_f32 v[{56+2*h}:{57+2*h}], v[{56+2*h}:{57+2*h}], v[{60+2*h}:{61+2*h}]")
        for h in range(2): A(f"v_pk_add_f32 v[{48+2*h}:{49+2*h}], v[{48+2*h}:{49+2*h}], v[{56+2*h}:{57+2*h}]")
    finred(48)
    bf16r([48])
    A("v_mul_f32 v48, v48, v124")
    bf16r([48])
    A("v_add_f32 v48, v48, v125\nv_cvt_pk_bf16_f32 v48, v48, v48")
    A("s_mov_b32 exec_lo, 0x000f000f\ns_mov_b32 exec_hi, 0x000f000f")
    A("buffer_store_short v48, v126, s[56:59], s43 offen" + o.get("outfl", " nt"))
    A("s_cmp_gt_u32 s2, 1\ns_cbranch_scc1 L_fin0")
    A("s_mov_b64 exec, 1\nv_mov_b32 v49, s65\nv_mov_b32 v50, 0\nbuffer_store_dword v49, v50, s[44:47], 0 offen" + o.get("outfl", " nt"))
    A.label("L_fin0")
    A("s_mov_b64 exec, -1")
    A("s_branch L_fin")
    A.label("L_reader")
    A("s_and_b32 s43, s3, 1\ns_lshl_b32 s43, s43, 10\nv_add_u32 v11, s43, v3")
    A(f"s_lshl_b32 s42, s5, 11\ns_add_u32 s42, s42, s78\ns_add_u32 s42, s42, s43\ns_add_u32 s42, s42, {WS_OP:#x}")
    A(f"v_mov_b32 v7, {L_C0}\nv_lshlrev_b32 v10, 5, v6\nv_lshl_add_u32 v10, v4, 3, v10")
    ldswait(7, 16, extra=f"ds_read_b64 v[16:17], v10 offset:{L_MLT}", sleep=2, dst=8)
    A("v_mov_b32 v20, v16")
    rowred("v_max_f32", [20])
    A("v_sub_f32 v16, v16, v20\nv_exp_f32 v14, v16")
    if o.get("mlreader"):
        A("s_cmp_lg_u32 s3, 4\ns_cbranch_scc1 L_rnoml\ns_setprio 3\nv_mul_f32 v21, v14, v17")
        rowred("v_add_f32", [21])
        A("v_mov_b32 v22, 0\nv_mov_b32 v23, s65")
        A(f"s_lshl_b32 s73, s5, 6\ns_add_u32 s73, s73, s78\ns_add_u32 s73, s73, {WS_ML:#x}")
        A("s_mov_b32 exec_lo, 0x10001\ns_mov_b32 exec_hi, 0x10001")
        A("s_cmp_eq_u32 s68, 2\ns_cbranch_scc0 L_rmlfar")
        A("buffer_store_dwordx4 v[20:23], v1, s[44:47], s73 offen\ns_branch L_rmldone")
        A("L_rmlfar:\nbuffer_store_dwordx4 v[20:23], v1, s[44:47], s73 offen sc1\nL_rmldone:\ns_mov_b64 exec, -1\ns_setprio 0")
        stamp(2)
        A("L_rnoml:")
    for w in range(16): A(f"v_mov_b32_dpp v{28+w}, v14 row_newbcast:{w} {DPPF}")
    F = [28 + w for w in range(16)]
    A(f"v_mov_b32 v7, {L_C1}")
    ldswait(7, 12, extra="\n".join(f"ds_read_b128 v[{48+4*w}:{51+4*w}], v11 offset:{L_OPL+2048*w}" for w in range(4, 16)), sleep=2, dst=8)
    idx_first[0] = 4
    wsum(24, 48, list(range(4, 16)), F)
    stamp(7)
    A(f"v_mov_b32 v7, {L_C2}")
    A("s_setprio 2")
    ldswait(7, 4, extra="\n".join(f"ds_read_b128 v[{48+4*w}:{51+4*w}], v11 offset:{L_OPL+2048*w}" for w in range(4)), sleep=0, dst=8)
    wsum(24, 48, list(range(4)), F)
    A("v_bfi_b32 v27, s66, v5, v27")
    if o["local"]:
        A("s_cmp_eq_u32 s68, 2\ns_cbranch_scc0 L_opfar")
        A("buffer_store_dwordx4 v[24:27], v3, s[44:47], s42 offen" + o.get("opfl", ""))
        stamp(8)
        A("s_branch L_fin")
    A.label("L_opfar")
    A("buffer_store_dwordx4 v[24:27], v3, s[44:47], s42 offen sc1")
    stamp(8)
    A("s_branch L_fin")
    A.label("L_wojob")
    assert o["woend"]
    A("s_lshr_b32 s79, s5, 3\ns_and_b32 s43, s3, 1")
    A("v_and_b32 v8, 7, v6\nv_lshlrev_b32 v8, 2, v8\nv_lshrrev_b32 v9, 1, v4\nv_lshrrev_b32 v10, 2, v6\nv_and_b32 v10, 2, v10\nv_xor_b32 v10, v4, v10\nv_add_u32 v8, v8, v10")
    A("v_lshlrev_b32 v8, 6, v8\nv_and_b32 v10, 1, v4")
    A("v_lshlrev_b32 v11, 11, v4\nv_lshl_add_u32 v11, v6, 4, v11")
    A("v_lshlrev_b32 v12, 7, v10\nv_lshl_add_u32 v12, v6, 3, v12\nv_lshl_add_u32 v12, v9, 2, v12")
    A("v_bfe_u32 v13, v1, 2, 1\nv_lshlrev_b32 v13, 7, v13\nv_lshl_add_u32 v13, v4, 4, v13")
    A("s_lshl_b32 s73, s3, 8\nv_add_u32 v12, s73, v12\nv_add_u32 v13, s73, v13")
    if o["wo4"]:
        A("v_bfe_u32 v14, v1, 3, 1\nv_lshl_add_u32 v13, v14, 6, v13\nv_and_b32 v9, 7, v1\nv_lshlrev_b32 v15, 14, v4\nv_lshl_add_u32 v15, v14, 16, v15\nv_lshl_add_u32 v15, v9, 4, v15")
        A("v_lshlrev_b32 v10, 8, v10\nv_lshl_add_u32 v10, v6, 5, v10\nv_lshrrev_b32 v0, 1, v4\nv_lshl_add_u32 v10, v0, 4, v10")
        A("v_bfe_u32 v0, v10, 4, 2\nv_lshlrev_b32 v0, 3, v0\nv_min_u32 v0, 20, v0\nv_lshrrev_b32_e64 v0, v0, s65")
    else: A("v_lshlrev_b32 v15, 14, v4\nv_lshl_add_u32 v15, v6, 3, v15")
    srd(52, 24, 0x400000)
    wo_cg("s7")
    A("s_lshl_b32 s48, s4, 19\ns_lshl_b32 s73, s79, 17\ns_add_u32 s48, s48, s73\ns_lshl_b32 s73, s43, 12\ns_add_u32 s48, s48, s73\ns_lshl_b32 s73, s7, 7\ns_add_u32 s48, s48, s73")
    A("s_add_u32 s49, s48, 0x2000\ns_add_u32 s50, s48, 0x10000\ns_add_u32 s51, s48, 0x12000")
    A(f"s_mul_i32 s7, s7, {o['SL']:#x}")
    A("s_lshl_b32 s76, s4, 3\ns_lshl_b32 s73, s79, 1\ns_add_u32 s76, s76, s73\ns_add_u32 s76, s76, s43")
    A(f"s_lshl_b32 s76, s76, 9\ns_add_u32 s76, s76, s7\ns_add_u32 s76, s76, {WS_SP:#x}")
    A(f"s_lshl_b32 s73, s79, 4\ns_add_u32 s6, s78, s73\ns_add_u32 s6, s6, {WS_ML:#x}")
    A(f"s_lshl_b32 s73, s43, 10\ns_add_u32 s42, s78, s73\ns_lshl_b32 s73, s79, 8\ns_add_u32 s42, s42, s73")
    for t in range(8): A(f"s_add_u32 s{56+t}, s42, {WS_OP+t*8192:#x}")
    if "wop" in o and o.get("mlfirst", True):
        A(f"v_mov_b32 v7, {L_C5}")
        ldswait(7, 4, sleep=2, dst=9)
        A("buffer_load_dwordx4 v[120:123], v8, s[44:47], s6 offen sc1")
    A(f"v_mov_b32 v7, {L_C4 if 'wop' in o else L_C3 if o['woc3'] else L_C5}")
    ldswait(7, o["woc3"] or o["woend"], sleep=1, dst=9)
    stamp(1)
    mlload = lambda: A("buffer_load_dwordx4 v[120:123], v8, s[44:47], s6 offen sc1")
    if not ("wop" in o and o.get("mlfirst", True)): mlload()
    if o["wo4"]:
        for i in range(8): A(f"buffer_load_dwordx4 v[{48+4*i}:{51+4*i}], {'v3' if 'w' in abl else 'v15'}, s[52:55], {0 if 'w' in abl else f's{48+(i>>2)}'} offen offset:{(i&3)*1024}{'' if 'w' in abl else NT}")
    else:
      for ks in range(2):
        for i in range(8):
            r = 48 + (ks * 8 + i) * 2
            A(f"buffer_load_dwordx2 v[{r}:{r+1}], v15, s[52:55], s{48+2*ks+(i>>2)} offen offset:{(i&3)*1024}{NT}")
    A(f"s_mov_b32 s7, 0\ns_waitcnt vmcnt({8 if o['wo4'] else 16})\nv_cmp_ne_u32 vcc, s65, v123\ns_cbranch_vccnz L_wperm")
    A.label("L_wfac")
    A("v_mov_b32 v124, v120")
    rowred("v_max_f32", [124])
    A("v_sub_f32 v120, v120, v124\nv_exp_f32 v120, v120\nv_mul_f32 v121, v120, v121")
    rowred("v_add_f32", [121])
    A("v_rcp_f32 v121, v121\nv_mul_f32 v14, v120, v121")
    for t in range(8): A(f"v_mov_b32_dpp v{112+t}, v14 row_newbcast:{t} {DPPF}")
    stamp(7)
    A("s_cmp_eq_u32 s7, 2\ns_mov_b32 s7, 1\ns_cbranch_scc1 L_wchk2")
    A.label("L_wperm")
    if not o["wo4"]:
        A("s_waitcnt vmcnt(8)")
        tile_perm(48, 0, 80)
    A("s_waitcnt vmcnt(0)\ns_setprio 2")
    def oloads():
        l = lab("nml")
        A(f"s_cmp_eq_u32 s7, 1\ns_cbranch_scc1 {l}")
        mlload()
        A.label(l)
        for t in range(8): A(f"buffer_load_dwordx4 v[{16+4*t}:{19+4*t}], v11, s[44:47], s{56+t} offen sc1")
    oloads()
    if o["wo4"]: perm8(48, 80)
    else: tile_perm(48, 1, 96)
    stamp(2)
    A(f"s_mov_b32 s75, {TIMEOUT}\ns_branch L_wchk")
    A.label("L_wpoll2")
    if o["sleep_t"]: A(f"s_sleep {o['sleep_t']}")
    if o.get("ohint"):
        A("v_and_b32 v9, 31, v1\nv_lshlrev_b32 v9, 11, v9\nv_and_b32 v14, 3, v1\nv_lshl_add_u32 v9, v14, 4, v9\ns_mov_b32 exec_hi, 0")
        A.label("L_whint")
        A("buffer_load_dword v14, v9, s[44:47], s56 offen offset:12 sc1\ns_waitcnt vmcnt(0)")
        A("v_xor_b32 v14, v5, v14\nv_and_b32 v14, s66, v14\nv_cmp_ne_u32 vcc, 0, v14\ns_cbranch_vccz L_whok")
        if o.get("sleep_hint"): A(f"s_sleep {o['sleep_hint']}")
        A("s_sub_u32 s75, s75, 1\ns_cmp_gt_u32 s75, 1\ns_cbranch_scc1 L_whint")
        A("L_whok:\ns_mov_b32 exec_hi, -1")
    oloads()
    A.label("L_wchk")
    A("s_cmp_eq_u32 s7, 1\ns_cbranch_scc1 L_wchk2")
    A("s_waitcnt vmcnt(8)\nv_cmp_ne_u32 vcc, s65, v123\ns_mov_b32 s7, 2\ns_cbranch_vccz L_wfac")
    A("s_mov_b32 s7, 0\ns_waitcnt vmcnt(0)\ns_branch L_wretry")
    A.label("L_wchk2")
    if o.get("fast", True):
        idx_first[0] = 0
        for t in range(8):
            A(f"s_waitcnt vmcnt({7-t})\nv_xor_b32 v{19+4*t}, v5, v{19+4*t}")
            wsum(48, 16, [t], [112 + u for u in range(8)])
            if t == 1: A("v_or_b32 v14, v19, v23")
            elif t & 1: A(f"v_or3_b32 v14, v14, v{15+4*t}, v{19+4*t}")
        A("v_and_b32 v14, s66, v14\nv_cmp_ne_u32 vcc, 0, v14")
    else:
        A("s_waitcnt vmcnt(0)")
        check(14, 16, 8)
    A("s_cbranch_vccz L_wok")
    A.label("L_wretry")
    A("s_sub_u32 s75, s75, 1\ns_cmp_lg_u32 s75, 0\ns_cbranch_scc1 L_wpoll2")
    A.label("L_wok")
    stamp(8)
    if o.get("c6early"):
        A(f"v_mov_b32 v7, {L_C6}\nv_mov_b32 v9, 1")
        bump(7, 9)
    idx_first[0] = 0
    if not o.get("fast", True): wsum(48, 16, list(range(8)), [112 + t for t in range(8)])
    A("v_permlane32_swap_b32 v48, v50\nv_permlane32_swap_b32 v49, v51\nv_add_f32 v48, v48, v50\nv_add_f32 v49, v49, v51\nv_cvt_pk_bf16_f32 v48, v48, v49")
    A(f"ds_write_b32 v12, v48 offset:{L_SCR}")
    if o["wo4"]:
        A(f"ds_read_b128 v[52:55], v13 offset:{L_SCR}\ns_waitcnt lgkmcnt(0)")
        for d in (0, 4, 1, 5, 2, 6, 3, 7): A(f"v_mfma_f32_16x16x32_bf16 v[{16+4*d}:{19+4*d}], v[52:55], v[{80+4*d}:{83+4*d}], 0")
        for d in (0, 4, 1, 5, 2, 6, 3, 7): A(f"v_mov_b32_dpp v{16+4*d}, v{17+4*d} row_ror:8 row_mask:0xc bank_mask:0xf")
        for d in range(4): A(f"v_permlane32_swap_b32 v{16+4*d}, v{32+4*d}")
        for d in range(4): A(f"v_add_f32 v{56+d}, v{16+4*d}, v{32+4*d}")
        A("v_bfi_b32 v59, s66, v0, v59")
        A("s_mov_b32 exec_lo, 0x00ff00ff\ns_mov_b32 exec_hi, 0x00ff00ff")
        A("buffer_store_dwordx4 v[56:59], v10, s[44:47], s76 offen sc1\ns_mov_b64 exec, -1")
    else:
        A(f"ds_read_b128 v[52:55], v13 offset:{L_SCR}\nds_read_b128 v[56:59], v13 offset:{L_SCR+64}")
        A("s_waitcnt lgkmcnt(0)")
        tile_mfma(60, 52, 80, True)
        tile_mfma(60, 56, 96, False)
        publish512(60, 76)
    if not o.get("c6early"):
        A(f"v_mov_b32 v7, {L_C6}\nv_mov_b32 v9, 1")
        bump(7, 9)
    A.label("L_fin")
    if o.get("dbgtime"):
        A("s_cmp_lg_u32 s3, 8\ns_cbranch_scc1 L_end")
        srd(48, 38, 256)
        A("s_memrealtime s[82:83]\ns_waitcnt lgkmcnt(0)\ns_not_b32 s80, s80\nv_mov_b32 v16, s80\nv_mov_b32 v17, s82\nv_mov_b32 v7, s67\nv_lshlrev_b32 v7, 3, v7\ns_mov_b64 exec, 1")
        A("buffer_atomic_umax v16, v7, s[48:51], 0 offen sc1\nbuffer_atomic_umax v17, v7, s[48:51], 0 offen offset:4 sc1")
    if debug:
        stamp(9)
        A("s_setprio 0\nL_dbgw:\ns_sleep 32\ns_memrealtime s[42:43]\ns_waitcnt lgkmcnt(0)\ns_sub_u32 s42, s42, s80\ns_cmp_lt_u32 s42, 2500\ns_cbranch_scc1 L_dbgw")
        for k in range(10): A(f"v_mov_b32 v{16+k}, s{80+2*k}")
        A("v_mov_b32 v26, s67\nv_mov_b32 v27, s75")
        A(f"s_lshl_b32 s73, s2, 4\ns_add_u32 s73, s73, s3\ns_lshl_b32 s73, s73, 6\ns_add_u32 s73, s73, {WS_STAMP:#x}")
        A("v_mov_b32 v7, 0\ns_mov_b64 exec, 1")
        for q in range(3): A(f"buffer_store_dwordx4 v[{16+4*q}:{19+4*q}], v7, s[44:47], s73 offen offset:{16*q}")
    A.label("L_end")
    A("s_endpgm")

    H = 112 if o.get("hpre") else 16
    def hpart():
        A(f"s_lshl_b32 s73, s7, 12\ns_add_u32 s42, s78, s73\ns_add_u32 s42, s42, {WS_HX:#x}")
        if o["hdelay"]: A(f"s_sleep {o['hdelay']}")
        stamp(1)
        def hloads():
            for t in range(4): A(f"buffer_load_dwordx4 v[{H+4*t}:{H+3+4*t}], v3, s[44:47], s42 offen offset:{t*1024} sc1")
        if "h" not in abl: poll(hloads, lambda: check(10, H, 4), sleep=o["sleep_h"])
        stamp(3)
        for e in range(4): A(f"v_add_f32 v{H+e}, v{H+e}, v{H+4+e}\nv_add_f32 v{H+8+e}, v{H+8+e}, v{H+12+e}")
        A(f"v_permlane32_swap_b32 v{H}, v{H+2}\nv_permlane32_swap_b32 v{H+1}, v{H+3}\nv_permlane32_swap_b32 v{H+8}, v{H+10}\nv_permlane32_swap_b32 v{H+9}, v{H+11}")
        A(f"v_add_f32 v{H}, v{H}, v{H+2}\nv_add_f32 v{H+1}, v{H+1}, v{H+3}\nv_add_f32 v{H+2}, v{H+8}, v{H+10}\nv_add_f32 v{H+3}, v{H+9}, v{H+11}")
        R4 = [H, H + 1, H + 2, H + 3]
        bf16r(R4)
        unpack(H + 4, 14, 2)
        for r in R4: A(f"v_add_f32 v{r}, v{r}, v{r+4}")
        bf16r(R4)
        A("s_mov_b32 s73, 0x3d372713")
        for r in R4: A(f"v_mul_f32 v{r+4}, v{r}, v{r}")
        for r in R4: A(f"v_fma_f32 v{r+4}, v{r+4}, s73, 1.0")
        for r in R4: A(f"v_mul_f32 v{r+4}, v{r+4}, v{r}")
        for r in R4: A(f"v_mul_f32 v{r+4}, 0xc0135761, v{r+4}")
        for r in R4: A(f"v_exp_f32 v{r+4}, v{r+4}")
        for r in R4: A(f"v_add_f32 v{r+4}, 1.0, v{r+4}")
        for r in R4: A(f"v_rcp_f32 v{r+4}, v{r+4}")
        for r in R4: A(f"v_mul_f32 v{r}, v{r}, v{r+4}")
        A(f"v_cvt_pk_bf16_f32 v{H}, v{H}, v{H+1}\nv_cvt_pk_bf16_f32 v{H+1}, v{H+2}, v{H+3}")
        A("v_and_b32 v10, 1, v4\nv_lshl_add_u32 v10, v10, 8, v13")
        A(f"ds_write_b32 v10, v{H} offset:{L_SCR}\nds_write_b32 v10, v{H+1} offset:{L_SCR+128}")
    A.label("L_svcmid")
    A("s_cmp_eq_u32 s62, 0\ns_cbranch_scc1 L_svcmid2")
    A("s_cmp_eq_u32 s62, 1\ns_cbranch_scc1 L_bjob")
    A("s_cmp_eq_u32 s68, 2\ns_cbranch_scc1 L_svcmid2\ns_mov_b32 exec_lo, 0x00ff00ff\ns_mov_b32 exec_hi, 0x00ff00ff")
    A("buffer_store_dwordx4 v[48:51], v52, s[44:47], s6 offen sc1\ns_mov_b64 exec, -1\ns_branch L_svcmid2")
    A.label("L_bjob")
    if H == 16: hpart()
    A("s_waitcnt vmcnt(0)")
    for i in range(16): A(f"ds_read_b128 v[{48+4*i}:{51+4*i}], v3 offset:{L_BT+1024*i}")
    A(f"s_movk_i32 s61, {L_SCR-L_XS}\nv_bfe_u32 v7, v1, 2, 1\nv_lshlrev_b32 v7, 8, v7\ns_waitcnt lgkmcnt(0)\ns_branch L_gemv2")
    A.label("L_svcmid2")
    A("v_mov_b32 v9, 1")
    A.label("L_noml")
    stamp(7)
    thr = o["thr"]
    A(f"s_mov_b32 s42, {thr[0] | thr[1] << 8 | thr[2] << 16 | thr[3] << 24:#x}\ns_lshl_b32 s73, s3, 3\ns_lshr_b32 s42, s42, s73\ns_and_b32 s42, s42, 0xff")
    A(f"v_mov_b32 v7, {L_C3}")
    ldswait(7, "s42", sleep=1, dst=8)
    A(f"s_setprio {o.get('v2prio', 1)}")
    for t in range(8): vload(t)
    A(f"s_setprio 3\nv_mov_b32 v8, {L_C5}")
    bump(8, 9)
    A(f"v_mov_b32 v8, {L_C2}")
    stamp(8)
    A("s_branch L_pphase")

    A.label("L_svc")
    A(f"v_lshlrev_b32 v6, 2, v1\nv_mov_b32 v7, 0\nds_write_b32 v6, v7 offset:{L_FLAG}")
    A("s_and_b32 s4, s2, 7\ns_lshr_b32 s5, s2, 3\nv_lshlrev_b32 v3, 4, v1\nv_and_b32 v6, 15, v1")
    A("s_lshl_b32 s76, s3, 2\ns_add_u32 s76, s76, 48\ns_mov_b32 s62, 0\ns_mov_b32 s63, 0\nv_mov_b32 v52, 0")
    A("v_bfe_u32 v7, v1, 3, 1\nv_lshl_add_u32 v7, v7, 2, v4\nv_and_b32 v0, 7, v1")
    A("s_cmp_ge_u32 s3, 2\ns_cbranch_scc1 L_svc2")
    A("s_cmp_eq_u32 s3, 1\ns_cbranch_scc1 L_w1")
    A("s_mov_b32 s54, 0x400000\ns_movk_i32 s43, 0x2000\ns_mov_b32 s63, 1")
    A("s_lshr_b32 s79, s5, 3\ns_and_b32 s73, s5, 7\ns_lshl_b32 s73, s73, 7\ns_lshl_b32 s68, s4, 10\ns_add_u32 s68, s68, s73")
    A(f"s_mul_i32 s6, s4, {o['SL']:#x}\ns_lshl_b32 s73, s5, 9\ns_add_u32 s6, s6, s73\ns_add_u32 s6, s6, {WS_QX+WS_LOC:#x}")
    A("s_waitcnt lgkmcnt(0)\ns_mov_b32 s52, s22\ns_mov_b32 s53, s23")
    A("s_branch L_gemv")
    A.label("L_w1")
    jobid("L_svc2", False)
    A(f"s_mov_b32 s54, {512*3584:#x}\ns_movk_i32 s43, 3584\ns_mov_b32 s63, 2")
    A("s_lshl_b32 s68, s79, 8\ns_and_b32 s73, s5, 4\ns_lshl_b32 s73, s73, 5\ns_add_u32 s68, s68, s73\ns_and_b32 s79, s5, 3")
    A(f"s_mul_i32 s6, s4, {o['SL']:#x}\ns_lshl_b32 s73, s7, 12\ns_add_u32 s6, s6, s73")
    A(f"s_and_b32 s73, s5, 7\ns_lshl_b32 s73, s73, 9\ns_add_u32 s6, s6, s73\ns_add_u32 s6, s6, {WS_HX:#x}")
    A("s_waitcnt lgkmcnt(0)\ns_mov_b32 s52, s28\ns_mov_b32 s53, s29")
    A.label("L_gemv")
    srd(48, 16, 2048)
    A("buffer_load_dwordx4 v[8:11], v3, s[48:51], 0 offen\nbuffer_load_dwordx4 v[12:15], v3, s[48:51], 0 offen offset:1024")
    A("s_mov_b32 s55, 0x00020000")
    A("s_lshl_b32 s73, s43, 3\nv_mul_u32_u24 v7, s73, v7\nv_lshl_add_u32 v7, v0, 4, v7")
    A("s_lshl_b32 s73, s43, 7\ns_mul_i32 s73, s73, s79\ns_add_u32 s42, s68, s73\ns_mul_i32 s60, s43, 57")
    for ks in range(2):
        for i in range(8):
            r = 48 + (ks * 8 + i) * 4
            if "t" not in abl: A(f"buffer_load_dwordx4 v[{r}:{r+3}], v7, s[52:55], s42 offen{NT}")
            if (ks, i) != (1, 7): A(f"s_add_u32 s42, s42, {'s60' if i == 7 else 's43'}")
    A.label("L_svc2")
    A("s_waitcnt lgkmcnt(0)\ns_mov_b32 s8, s18\ns_mov_b32 s9, s19")
    A("s_barrier")
    common(1, 0)
    A("s_cmp_eq_u32 s63, 0\ns_cbranch_scc1 L_wk")
    A("s_lshl_b32 s61, s3, 11\nv_add_u32 v0, s61, v3")
    A("s_waitcnt vmcnt(16)")
    stamp(1)
    A.label("L_ln")
    layernorm(8, 16, 32)
    A("s_sub_u32 s63, s63, 1\ns_cmp_lg_u32 s63, 0\ns_cbranch_scc1 L_ln")
    A(f"ds_write_b128 v0, v[8:11] offset:{L_XS}\nds_write_b128 v0, v[12:15] offset:{L_XS+1024}")
    A("v_bfe_u32 v7, v1, 2, 1\nv_lshlrev_b32 v7, 10, v7\ns_lshl_b32 s73, s79, 8\ns_add_u32 s61, s61, s73")
    A("s_waitcnt lgkmcnt(0)")
    tags()
    A.label("L_gemv2")
    A("v_bfe_u32 v0, v1, 3, 1\nv_lshl_add_u32 v7, v0, 6, v7\nv_lshl_add_u32 v7, v4, 4, v7\nv_add_u32 v7, s61, v7")
    for ks in range(2): A(f"ds_read_b128 v[{8+4*ks}:{11+4*ks}], v7 offset:{L_XS+128*ks}")
    for ks in range(2):
        A(f"s_waitcnt vmcnt({8-8*ks})")
        perm8(48 + 32 * ks, 16)
        if ks == 0: A("s_waitcnt lgkmcnt(0)")
        for d in range(8):
            c = "0" if ks == 0 else f"v[{48+4*d}:{51+4*d}]"
            A(f"v_mfma_f32_16x16x32_bf16 v[{48+4*d}:{51+4*d}], v[{8+4*ks}:{11+4*ks}], v[{16+4*d}:{19+4*d}], {c}")
    A("v_and_b32 v7, 1, v4\nv_lshlrev_b32 v7, 8, v7\nv_lshl_add_u32 v7, v6, 5, v7\nv_lshrrev_b32 v0, 1, v4\nv_lshl_add_u32 v7, v0, 4, v7")
    A("v_bfe_u32 v0, v7, 4, 2\nv_lshlrev_b32 v0, 3, v0\nv_min_u32 v0, 20, v0\nv_lshrrev_b32_e64 v0, v0, s65")
    for d in range(8): A(f"v_mov_b32_dpp v{48+4*d}, v{49+4*d} row_ror:8 row_mask:0xc bank_mask:0xf")
    for d in range(4): A(f"v_permlane32_swap_b32 v{48+4*d}, v{64+4*d}")
    for d in range(4): A(f"v_add_f32 v{48+d}, v{48+4*d}, v{64+4*d}")
    A("v_bfi_b32 v51, s66, v0, v51\nv_mov_b32 v52, v7")
    A("s_mov_b32 exec_lo, 0x00ff00ff\ns_mov_b32 exec_hi, 0x00ff00ff")
    A("s_cmp_lt_u32 s3, 2\ns_cbranch_scc1 L_qpub")
    if o.get("mpwait"):
        A(f"s_mov_b64 exec, -1\nv_mov_b32 v10, {L_C3}")
        ldswait(10, o["mpwait"], sleep=2, dst=11)
        A("s_mov_b32 exec_lo, 0x00ff00ff\ns_mov_b32 exec_hi, 0x00ff00ff")
    if "m" not in abl: A("buffer_store_dwordx4 v[48:51], v52, s[44:47], s6 offen sc1")
    A("s_mov_b64 exec, -1")
    stamp(2)
    A("s_branch L_svcmid2")
    A.label("L_qpub")
    if "s" not in abl: A("buffer_store_dwordx4 v[48:51], v52, s[44:47], s6 offen")
    A("s_mov_b64 exec, -1")
    stamp(2)
    A("s_cmp_eq_u32 s3, 1\ns_cselect_b32 s62, 3, 0\ns_cbranch_scc1 L_w01k")
    A("v_mov_b32 v12, s67\nv_mov_b32 v15, s65")
    A(f"s_lshl_b32 s42, s5, 4\ns_add_u32 s42, s42, s78\ns_add_u32 s42, s42, {WS_XI+WS_LOC:#x}\ns_mov_b64 exec, 1")
    if "s" not in abl: A("buffer_store_dwordx4 v[12:15], v3, s[44:47], s42 offen")
    A("s_mov_b64 exec, -1")
    A.label("L_w01k")
    svc_k(o["W0k"])
    A("s_waitcnt vmcnt(0)\ns_branch L_sphase")
    A.label("L_wk")
    if o.get("tlb"):
        A("s_cmp_lg_u32 s3, 2\ns_cbranch_scc1 L_notlb\ns_mov_b64 exec, 1\nv_mov_b32 v8, 0\ns_lshl_b32 s73, s4, 19\nv_mov_b32 v9, s73")
        if "v" in o["tlb"]: A(f"buffer_load_dword v80, v8, s[12:15], {BS[0]} offen nt")
        if "w" in o["tlb"]: A("global_load_dword v81, v9, s[24:25] nt")
        if "o" in o["tlb"]: A("global_load_dword v82, v8, s[36:37]\nglobal_load_dword v83, v8, s[34:35]")
        if "m" in o["tlb"]: A("global_load_dword v84, v8, s[32:33]\nglobal_load_dword v85, v8, s[30:31]\nglobal_load_dword v86, v8, s[40:41]")
        A("s_mov_b64 exec, -1\nL_notlb:")
    svc_k(o["W23k"])
    A("s_cmp_eq_u32 s3, 2\ns_cbranch_scc1 L_qg")
    A("s_cmp_lg_u32 s3, 3\ns_cbranch_scc1 L_wk2")
    jobid("L_wk2", True)
    srd(52, 32, 1792 * 1024); srd(56, 30, 3584)
    A(f"s_mov_b32 s62, 1\ns_add_u32 s73, s5, {o.get('brot', 2)}\ns_and_b32 s73, s73, 7\ns_lshl_b32 s42, s73, 7")
    A(f"s_mul_i32 s6, s73, {o['SL']:#x}\ns_lshl_b32 s73, s79, 9\ns_add_u32 s6, s6, s73\ns_add_u32 s6, s6, {WS_MP:#x}")
    A("s_lshl_b32 s73, s79, 17\ns_add_u32 s42, s42, s73\nv_lshlrev_b32 v7, 13, v7\nv_lshl_add_u32 v7, v0, 4, v7")
    A("v_lshrrev_b32 v13, 1, v4\nv_lshlrev_b32 v13, 2, v13\nv_lshl_add_u32 v13, v6, 3, v13")
    if o.get("btwait", True): A("s_waitcnt vmcnt(0)")
    for grp in range(4):
        A(f"s_mov_b32 m0, {L_BT+4096*grp}\ns_add_u32 s73, s42, {(64*(grp>>1)+4*(grp&1))*1024}")
        for i in range(4):
            if "b" not in abl: A(f"buffer_load_dwordx4 v7, s[52:55], s73 offen offset:{1024*i}{NT} lds")
    A("s_lshl_b32 s73, s79, 8")
    A("buffer_load_dword v14, v13, s[56:59], s73 offen\nbuffer_load_dword v15, v13, s[56:59], s73 offen offset:128")
    if H != 16:
        A("s_waitcnt lgkmcnt(0)")
        tags()
        hpart()
        A("s_branch L_sphase")
    else: A("s_waitcnt vmcnt(18)\ns_branch L_sphase")
    A.label("L_wk2")
    A("s_waitcnt vmcnt(0)\ns_branch L_sphase")
    A.label("L_qg")
    A("v_lshlrev_b32 v7, 9, v4\nv_lshl_add_u32 v7, v6, 4, v7\nv_and_b32 v9, 0x1ff, v3")
    A(f"s_and_b32 s73, s5, 1\ns_lshl_b32 s73, s73, 8\ns_add_u32 s42, s78, s73\ns_add_u32 s43, s78, {WS_XI+WS_LOC:#x}")
    for kq in range(4): A(f"s_add_u32 s{56+kq}, s42, {WS_QX+WS_LOC+kq*4096:#x}")
    A("s_waitcnt vmcnt(0) lgkmcnt(0)")
    tags()
    if o["qdelay"]: A(f"s_sleep {o['qdelay']}")
    stamp(1)
    def qloads():
        for kq in range(4):
            for u in range(2):
                r = 80 + (kq * 2 + u) * 4
                A(f"buffer_load_dwordx4 v[{r}:{r+3}], v7, s[44:47], s{56+kq} offen offset:{u*2048} sc1")
        A("buffer_load_dwordx4 v[112:115], v9, s[44:47], s43 offen sc1")
    A(f"s_mov_b32 s75, {TIMEOUT}\ns_mov_b32 s7, 0")
    if "q" in abl: A("s_mov_b32 s43, 2\ns_branch L_qsum")
    A.label("L_qpoll")
    qloads()
    A("s_waitcnt vmcnt(0)")
    check(8, 80, 8, full=[115])
    A("s_cbranch_vccz L_qok")
    A("s_sub_u32 s75, s75, 1\ns_cmp_eq_u32 s75, 0\ns_cbranch_scc1 L_qok")
    A(f"s_sleep {o['sleep_q']}\ns_cmp_gt_u32 s75, {TIMEOUT - o.get('qtries', 4)}\ns_cbranch_scc1 L_qpoll")
    for r in (56, 57, 58, 59, 43): A(f"s_xor_b32 s{r}, s{r}, {WS_LOC:#x}")
    A("s_cmp_lg_u32 s7, 0\ns_cbranch_scc1 L_qpoll\ns_mov_b32 s7, 1")
    A.label("L_qrep")
    A(f"s_lshl_b32 s61, s5, 9\ns_add_u32 s61, s61, s78\ns_add_u32 s61, s61, {WS_QX:#x}\ns_add_u32 s60, s61, {WS_LOC:#x}\ns_mov_b32 s63, {TIMEOUT}")
    A.label("L_qrep2")
    A("buffer_load_dwordx4 v[116:119], v9, s[44:47], s60 offen sc1\ns_waitcnt vmcnt(0)")
    A("v_xor_b32 v8, v5, v119\nv_and_b32 v8, s66, v8\nv_cmp_ne_u32 vcc, 0, v8\ns_cbranch_vccz L_qrep3")
    A("s_sub_u32 s63, s63, 1\ns_cmp_lg_u32 s63, 0\ns_cbranch_scc1 L_qrep2")
    A.label("L_qrep3")
    A("buffer_store_dwordx4 v[116:119], v9, s[44:47], s61 offen sc1")
    A("v_mov_b32 v120, s67\nv_mov_b32 v123, s65")
    A(f"s_lshl_b32 s61, s5, 4\ns_add_u32 s61, s61, s78\ns_add_u32 s61, s61, {WS_XI:#x}\ns_mov_b64 exec, 1")
    A("buffer_store_dwordx4 v[120:123], v3, s[44:47], s61 offen sc1\ns_mov_b64 exec, -1")
    A("s_cmp_eq_u32 s7, 1\ns_cbranch_scc1 L_qpoll\ns_branch L_qsum")
    A.label("L_qok")
    A("v_cmp_ne_u32 vcc, s67, v112\ns_cmp_eq_u64 vcc, 0\ns_cselect_b32 s43, 2, 1\ns_cbranch_scc1 L_qsum")
    A("s_cmp_lg_u32 s7, 0\ns_cbranch_scc1 L_qsum\ns_mov_b32 s7, 2\ns_branch L_qrep")
    A.label("L_qsum")
    if debug: A("s_mov_b32 s84, s75")
    for u in range(2):
        for e in range(4):
            r = 80 + u * 4 + e
            A(f"v_add_f32 v{r}, v{r}, v{r+8}\nv_add_f32 v{r+16}, v{r+16}, v{r+24}")
    for r in range(80, 88): A(f"v_add_f32 v{r}, v{r}, v{r+16}")
    for i in range(4): A(f"v_cvt_pk_bf16_f32 v{8+i}, v{80+2*i}, v{81+2*i}")
    A("v_lshlrev_b32 v7, 3, v1")
    A(f"ds_write_b64 v7, v[8:9] offset:{L_QF}\nds_write_b64 v7, v[10:11] offset:{L_QF+512}")
    A(f"v_mov_b32 v7, {L_FLAG}\nv_mov_b32 v12, s43\nds_write_b32 v7, v12")
    stamp(3)
    A("s_branch L_sphase")
    A.label("L_codeend")
    A('.section .rodata,"a"\n.p2align 6')
    A(f".amdhsa_kernel {NAME}_kernel\n.amdhsa_next_free_vgpr 128\n.amdhsa_next_free_sgpr 102\n.amdhsa_accum_offset 128")
    A(".amdhsa_group_segment_fixed_size 0\n.amdhsa_kernarg_size 104\n.amdhsa_user_sgpr_count 2\n.amdhsa_user_sgpr_kernarg_segment_ptr 1\n.amdhsa_system_sgpr_workgroup_id_x 1\n.end_amdhsa_kernel")
    txt = A.finish()
    if o["stnt"]:
        txt = "\n".join((l + " nt" if "buffer_store_dwordx4" in l and "sc1" not in l and "s73 offen offset" not in l else l) for l in txt.split("\n"))
    return txt

if __name__ == "__main__":
    name = sys.argv[1] if len(sys.argv) > 1 else "k18"
    opts = eval(sys.argv[2]) if len(sys.argv) > 2 else {}
    open(name + ".s", "w").write(gen(False, opts))
    open(name + "d.s", "w").write(gen(True, opts))
```

```python
import sys
from asmlib import Asm
NAME = "recurrent_scan__gqa_block_cached__mixer_channel_mlp__decode"

WS_XI = 0x400
WS_ML = 0x800
WS_QX = 0x4000
WS_HX = 0x8000
WS_MP = 0xc000
WS_OP = 0x10000
WS_SP = 0x20000
WS_LOC = 0x30000
WS_STAMP = 0x8000000
WS_SIZE = 0x10000000
L_QF = 0
L_FLAG = 1024
L_C0 = 1028
L_C1 = 1032
L_C2 = 1036
L_C3 = 1040
L_C4 = 1100
L_QP = 1048
L_C5 = 1052
L_HR = 1056
L_C6 = 1060
L_CS = 1064
L_POL = 1068
L_MLT = 1536
L_XS = 2048
L_SCR = 6144
L_OPL = 10240
L_WOT = L_OPL + 16 * 2048
L_BT = L_WOT
LDS_BYTES = L_WOT + 16384

DPPF = "row_mask:0xf bank_mask:0xf"
TIMEOUT = 200000
N = None

def gen(debug=False, opts=None):
    o = dict(sleep_q=8, sleep_h=8, sleep_t=0, sleep_ml=2, Spos=12,
             wa=[N, N, 1, 1, 1, 1, 1, 1, 1, 1, 1, 1, N, N, N, N], wb=None,
             W0k=4, W23k=4, Wwo=8, SL=0x40000, kvmap=2, thr=(12, 12, 12, 12), local=True, xmask=0x1f800, touch=True,
             rot=3, pk=True, nt=True, codepf=2, wo2late=False, wo3late=False, Blate=False, earlybar=False, qdelay=0, hdelay=0, WBk=4, xm=0x187800, qfirst=0, W2k=8, xihint=False, woend=2, wop=1, Bend=4, wo4=True, Bc3=12, woc3=0, mlreader=True, hold=(6, 15, 0), fpar=1, mpearly=4, hpre=True, stnt=False)
    o.update(opts or {})
    if o["wb"] is None: o["wb"] = o["wa"]
    NT = o["nt"] if isinstance(o["nt"], str) else " nt" if o["nt"] else ""
    abl = o.get("abl", "")
    A = Asm()
    uid = [0]
    def lab(s):
        uid[0] += 1
        return f"L_{s}_{uid[0]}"
    def stamp(k, early=False):
        if o.get("dbgstart") and k in (3, 5, 7, 8) and not early: return
        if early and not o.get("dbgstart"): return
        if debug: A(f"s_memrealtime s[{80+2*k}:{81+2*k}]")
    def srd(d, p, size):
        A(f"s_mov_b32 s{d}, s{p}\ns_mov_b32 s{d+1}, s{p+1}\ns_mov_b32 s{d+2}, {size:#x}\ns_mov_b32 s{d+3}, 0x00020000")
    def tags():
        A("s_add_u32 s65, s64, 0x01010101\nv_and_b32 v5, 3, v1\nv_lshlrev_b32 v5, 3, v5\nv_min_u32 v5, 20, v5\nv_lshrrev_b32_e64 v5, v5, s65\nv_and_b32 v5, s66, v5")
    def check(acc, base, nl, full=()):
        r = [base + 4 * i + 3 for i in range(nl)]
        for x in r: A(f"v_xor_b32 v{x}, v5, v{x}")
        if nl == 1: A(f"v_and_b32 v{acc}, s66, v{r[0]}")
        else:
            if nl == 2: A(f"v_or_b32 v{acc}, v{r[0]}, v{r[1]}"); i = 2
            else: A(f"v_or3_b32 v{acc}, v{r[0]}, v{r[1]}, v{r[2]}"); i = 3
            while i < nl:
                if i + 1 < nl: A(f"v_or3_b32 v{acc}, v{acc}, v{r[i]}, v{r[i+1]}"); i += 2
                else: A(f"v_or_b32 v{acc}, v{acc}, v{r[i]}"); i += 1
            A(f"v_and_b32 v{acc}, s66, v{acc}")
        for x in full: A(f"v_bitop3_b32 v{acc}, v{x}, s65, v{acc} bitop3:0xbe")
        A(f"v_cmp_ne_u32 vcc, 0, v{acc}")
    def poll(loads, chk, sleep=1):
        l0 = lab("poll"); l1 = lab("pok")
        A(f"s_mov_b32 s75, {TIMEOUT}")
        A.label(l0)
        loads()
        A("s_waitcnt vmcnt(0)")
        chk()
        A(f"s_cbranch_vccz {l1}")
        A(f"s_sub_u32 s75, s75, 1\ns_cmp_eq_u32 s75, 0\ns_cbranch_scc1 {l1}")
        if sleep: A(f"s_sleep {sleep}")
        A(f"s_branch {l0}")
        A.label(l1)
    def rowred(op, regs):
        for sh in (8, 4, 2, 1):
            for r in regs: A(f"{op}_dpp v{r}, v{r}, v{r} row_ror:{sh} {DPPF}")
    def xred(op, regs, tmps, which=(16, 32)):
        for w in which:
            for r, t in zip(regs, tmps): A(f"v_mov_b32 v{t}, v{r}")
            for r, t in zip(regs, tmps): A(f"v_permlane{w}_swap_b32 v{r}, v{t}")
            for r, t in zip(regs, tmps): A(f"{op} v{r}, v{r}, v{t}")
    def unpack(dst, src, n):
        for i in range(n):
            A(f"v_lshlrev_b32 v{dst+2*i}, 16, v{src+i}")
            A(f"v_and_b32 v{dst+2*i+1}, s77, v{src+i}")
    def layernorm(xp, u, t):
        unpack(u, xp, 8)
        for b in range(2):
            A(f"v_add_f32 v{t+b}, v{u+8*b}, v{u+8*b+1}")
            for i in range(2, 8): A(f"v_add_f32 v{t+b}, v{t+b}, v{u+8*b+i}")
        rowred("v_add_f32", [t, t+1])
        xred("v_add_f32", [t, t+1], [t+2, t+3])
        A(f"v_mul_f32 v{t}, 0x3b000000, v{t}\nv_mul_f32 v{t+1}, 0x3b000000, v{t+1}")
        for b in range(2):
            for i in range(8):
                A(f"v_sub_f32 v{t+4}, v{u+8*b+i}, v{t+b}")
                if i == 0: A(f"v_mul_f32 v{t+2+b}, v{t+4}, v{t+4}")
                else: A(f"v_fmac_f32 v{t+2+b}, v{t+4}, v{t+4}")
        rowred("v_add_f32", [t+2, t+3])
        xred("v_add_f32", [t+2, t+3], [t+4, t+5])
        A(f"v_mul_f32 v{t+2}, 0x3b000000, v{t+2}\nv_mul_f32 v{t+3}, 0x3b000000, v{t+3}")
        A(f"v_cvt_pk_bf16_f32 v{t+4}, v{t}, v{t+1}")
        A(f"v_cvt_pk_bf16_f32 v{t+5}, v{t+2}, v{t+3}")
        unpack(t, t+4, 2)
        A(f"v_add_f32 v{t+2}, 0x3727c5ac, v{t+2}\nv_add_f32 v{t+3}, 0x3727c5ac, v{t+3}")
        A(f"v_cvt_pk_bf16_f32 v{t+5}, v{t+2}, v{t+3}")
        unpack(t+2, t+5, 1)
        A(f"v_sqrt_f32 v{t+2}, v{t+2}\nv_sqrt_f32 v{t+3}, v{t+3}")
        A(f"v_cvt_pk_bf16_f32 v{t+5}, v{t+2}, v{t+3}")
        unpack(t+2, t+5, 1)
        A(f"v_rcp_f32 v{t+2}, v{t+2}\nv_rcp_f32 v{t+3}, v{t+3}")
        for b in range(2):
            for i in range(8): A(f"v_sub_f32 v{u+8*b+i}, v{u+8*b+i}, v{t+b}")
        for i in range(8): A(f"v_cvt_pk_bf16_f32 v{xp+i}, v{u+2*i}, v{u+2*i+1}")
        unpack(u, xp, 8)
        for b in range(2):
            for i in range(8): A(f"v_mul_f32 v{u+8*b+i}, v{u+8*b+i}, v{t+2+b}")
        for i in range(8): A(f"v_cvt_pk_bf16_f32 v{xp+i}, v{u+2*i}, v{u+2*i+1}")
    def tile_perm(src, ks, T):
        for j in range(2):
            for p in range(4):
                a = src + (ks * 8 + 2 * p) * 2 + j; b = src + (ks * 8 + 2 * p + 1) * 2 + j
                A(f"v_perm_b32 v{T+4*(2*j)+p}, v{b}, v{a}, s69")
                A(f"v_perm_b32 v{T+4*(2*j+1)+p}, v{b}, v{a}, s70")
    def tile_mfma(D, Af, T, first):
        for d in range(4):
            c = "0" if first else f"v[{D+4*d}:{D+4*d+3}]"
            A(f"v_mfma_f32_16x16x32_bf16 v[{D+4*d}:{D+4*d+3}], v[{Af}:{Af+3}], v[{T+4*d}:{T+4*d+3}], {c}")
    def publish512(D, soff):
        A(f"v_mov_b32 v{D+1}, v{D+4}\nv_mov_b32 v{D+2}, v{D+8}\nv_bfi_b32 v{D+3}, s66, v5, v{D+12}")
        A("s_mov_b32 exec_hi, 0")
        A(f"buffer_store_dwordx4 v[{D}:{D+3}], v3, s[44:47], s{soff} offen sc1")
        A("s_mov_b32 exec_hi, -1")
    def bf16r(regs):
        for r in regs: A(f"v_cvt_pk_bf16_f32 v{r}, v{r}, v{r}")
        for r in regs: A(f"v_and_b32 v{r}, s77, v{r}")
    def ldswait(addr_reg, target, extra="", sleep=1, dst=None):
        l0 = lab("lw"); l1 = lab("lok")
        A(f"s_mov_b32 s75, {TIMEOUT*4}")
        A.label(l0)
        A(f"ds_read_b32 v{dst}, v{addr_reg}")
        A(extra)
        A("s_waitcnt lgkmcnt(0)")
        A(f"v_readfirstlane_b32 s73, v{dst}\ns_cmp_ge_u32 s73, {target}\ns_cbranch_scc1 {l1}")
        A(f"s_sub_u32 s75, s75, 1\ns_cmp_eq_u32 s75, 0\ns_cbranch_scc1 {l1}")
        if sleep: A(f"s_sleep {sleep}")
        A(f"s_branch {l0}")
        A.label(l1)
    def bump(addr_reg, one_reg):
        A(f"s_mov_b64 exec, 1\nds_add_u32 v{addr_reg}, v{one_reg}\ns_mov_b64 exec, -1")
    def finred(a):
        A(f"v_permlane32_swap_b32 v{a}, v{a+2}\nv_permlane32_swap_b32 v{a+1}, v{a+3}\nv_add_f32 v{a}, v{a}, v{a+2}\nv_add_f32 v{a+1}, v{a+1}, v{a+3}")
        A(f"v_permlane16_swap_b32 v{a}, v{a+1}\nv_add_f32 v{a}, v{a}, v{a+1}")
        A(f"v_add_f32_dpp v{a}, v{a}, v{a} row_ror:8 {DPPF}\nv_add_f32_dpp v{a}, v{a}, v{a} row_ror:4 {DPPF}")
    def wsum(acc, data, idx, F):
        for k, i in enumerate(idx):
            for h in range(2):
                d = data + 4 * i + 2 * h; a = acc + 2 * h; f = F[i]; fe = f & ~1
                sel = f & 1
                if k == 0 and idx[0] == idx_first[0]:
                    A(f"v_pk_mul_f32 v[{a}:{a+1}], v[{d}:{d+1}], v[{fe}:{fe+1}] op_sel:[0,{sel}] op_sel_hi:[1,{sel}]")
                else:
                    A(f"v_pk_fma_f32 v[{a}:{a+1}], v[{d}:{d+1}], v[{fe}:{fe+1}], v[{a}:{a+1}] op_sel:[0,{sel},0] op_sel_hi:[1,{sel},1]")
    idx_first = [None]
    BS = ["s96", "s97", "s98", "s99"] if not debug else ["s100", "s101", "s72", "s74"]
    def kload(t): A(f"buffer_load_dwordx4 v[{16+4*t}:{19+4*t}], v2, s[8:11], {BS[t>>1]} offen offset:{(t&1)*1024}{NT}")
    def vload(t): A(f"buffer_load_dwordx4 v[{48+4*t}:{51+4*t}], v3, s[12:15], {BS[t>>1]} offen offset:{(t&1)*1024}{NT}")
    def svc_k(W):
        for t in range(8):
            if t >= W: A(f"s_waitcnt vmcnt({W-1})")
            kload(t)
    Spos_ = o["Spos"]
    def stream_issue(n0, n1):
        ev = o.get("evsites", [4, 7, 9])
        evt = o.get("evtab")
        for n in range(n0, n1):
            a = o["wa"][n]
            pol = o.get("pol")
            if pol:
                cp = pol[0]
                if n == cp:
                    A("s_cmp_lg_u32 s3, 4\ns_cbranch_scc1 L_pol0\ns_waitcnt vmcnt(1) lgkmcnt(0)\ns_mov_b32 s60, 1\ns_atomic_add s60, s[40:41], s26 glc\nL_pol0:")
                if n == cp + 2:
                    A("s_cmp_lg_u32 s3, 4\ns_cbranch_scc1 L_pol1\ns_waitcnt vmcnt(1) lgkmcnt(0)\ns_sub_u32 s60, s60, s27")
                    A(f"s_cmp_lt_u32 s60, {pol[1]}\ns_cselect_b32 s61, 2, 0\ns_cmp_ge_u32 s60, {pol[2]}\ns_cselect_b32 s61, 1, s61")
                    A(f"v_mov_b32 v8, {L_POL}\nv_mov_b32 v9, s61\nds_write_b32 v8, v9\nL_pol1:")
                if n == cp + 3:
                    A(f"s_waitcnt vmcnt(1)\nv_mov_b32 v8, {L_POL}\nds_read_b32 v9, v8\ns_waitcnt lgkmcnt(0)\nv_readfirstlane_b32 s61, v9")
                if cp + 3 < n < Spos_ and a is not None:
                    l = lab("po")
                    A(f"s_cmp_eq_u32 s61, 1\ns_cbranch_scc1 {l}\ns_waitcnt vmcnt({a})")
                    if n in pol[3]: A(f"s_cmp_eq_u32 s61, 0\ns_cbranch_scc1 {l}\ns_waitcnt vmcnt(0)")
                    A.label(l)
                    a = None
            bo = o.get("boost")
            if a is not None and bo and bo[0] <= n < bo[1]:
                l = lab("bo")
                A(f"s_waitcnt vmcnt({a+1})\ns_cbranch_scc1 {l}\ns_waitcnt vmcnt({a})\n{l}:")
            elif a is not None: A(f"s_waitcnt vmcnt({a})")
            if evt:
                for k, e in enumerate(ev):
                    if n in (e, e + 1) and max(evt) > k:
                        l = lab("sk")
                        A(f"s_cmp_le_u32 s62, {k}\ns_cbranch_scc1 {l}\ns_waitcnt vmcnt(0)\n{l}:")
            (kload if n < 8 else vload)(n % 8)
    def wo_cg(dst):
        A(f"s_lshl_b32 {dst}, s43, 2\ns_add_u32 {dst}, {dst}, s5\ns_add_u32 {dst}, {dst}, {o['rot']}\ns_and_b32 {dst}, {dst}, 7")
    def perm8(src, T):
        for j in range(4):
            for p in range(4):
                a = src + 8 * p + j; b = a + 4
                A(f"v_perm_b32 v{T+8*j+p}, v{b}, v{a}, s69\nv_perm_b32 v{T+8*j+4+p}, v{b}, v{a}, s70")
    def wotile(mid=None):
        srd(52, 24, 0x400000)
        A("v_bfe_u32 v14, v1, 3, 1\nv_and_b32 v13, 7, v1\nv_lshlrev_b32 v15, 14, v4\nv_lshl_add_u32 v15, v14, 16, v15\nv_lshl_add_u32 v15, v13, 4, v15")
        A("s_lshr_b32 s79, s5, 3\ns_and_b32 s43, s3, 1\ns_lshl_b32 s42, s4, 19\ns_lshl_b32 s73, s79, 17\ns_add_u32 s42, s42, s73\ns_lshl_b32 s73, s43, 12\ns_add_u32 s42, s42, s73")
        wo_cg("s73")
        A("s_lshl_b32 s73, s73, 7\ns_add_u32 s42, s42, s73\ns_add_u32 s73, s42, 0x2000")
        if mid:
            A(f"s_mov_b32 s7, s73\nv_mov_b32 v7, {L_C5}")
            ldswait(7, o["woend"], sleep=1, dst=9)
            A("s_mov_b32 s73, s7")
            stamp(1)
        for i in range(8):
            if i >= o["Wwo"]: A(f"s_waitcnt vmcnt({o['Wwo']-1})")
            A(f"buffer_load_dwordx4 v[{48+4*i}:{51+4*i}], v15, s[52:55], {'s73' if i >= 4 else 's42'} offen offset:{(i&3)*1024}{NT}")
        A("v_lshlrev_b32 v15, 12, v14\nv_lshl_add_u32 v15, v4, 8, v15\nv_lshl_add_u32 v15, v13, 5, v15")
        A(f"s_lshl_b32 s73, s43, 13\nv_add_u32 v15, s73, v15\nv_mov_b32 v13, {L_C4}\nv_mov_b32 v14, 1")
        if mid: mid()
        else: A("s_waitcnt vmcnt(0)")
        perm8(48, 80)
        for d in range(8): A(f"ds_write_b128 v15, v[{80+4*d}:{83+4*d}] offset:{L_WOT+1024*(d&3)+16*(d>>2)}")
        if not mid:
            bump(13, 14)
            A("s_waitcnt lgkmcnt(0)")
    def jobid(none, second):
        cnt = o.get("rgcnt", [4, 2, 2, 2, 2, 0, 2, 0])
        assert sum(cnt) == 14
        base = [sum(cnt[:i]) for i in range(8)]
        tb = sum(min(b, 15) << 4 * i for i, b in enumerate(base)); tc = sum(c << 4 * i for i, c in enumerate(cnt))
        A(f"s_bitcmp{0 if second else 1}_b32 s5, 3\ns_cselect_b32 s7, 2, 0\ns_lshr_b32 s73, s5, 4\ns_add_u32 s7, s7, s73")
        A(f"s_lshl_b32 s73, s4, 2\ns_lshr_b32 s79, {tc:#x}, s73\ns_and_b32 s79, s79, 15\ns_cmp_ge_u32 s7, s79\ns_cbranch_scc1 {none}")
        A(f"s_lshr_b32 s79, {tb:#x}, s73\ns_and_b32 s79, s79, 15\ns_add_u32 s79, s79, s7")
    A(f"; @launch grid=(256,1,1) block=(1024,1,1) lds={LDS_BYTES}")
    A('.amdgcn_target "amdgcn-amd-amdhsa--gfx950"\n.text')
    A(f".globl {NAME}_kernel\n.p2align 8\n.type {NAME}_kernel,@function\n{NAME}_kernel:")
    A("s_load_dwordx16 s[16:31], s[0:1], 0\ns_load_dwordx8 s[32:39], s[0:1], 64\ns_load_dwordx2 s[40:41], s[0:1], 96")
    A("s_cmp_ge_u32 s2, 256\ns_cbranch_scc1 L_end")
    stamp(0)
    if o.get("dbgtime") or o.get("padto"): A("s_memrealtime s[80:81]")
    if o["codepf"]:
        if o["codepf"] == 2:
            A("v_cmp_gt_u32 vcc, 0x80, v0\ns_cbranch_vccz L_nopf\ns_getpc_b64 s[42:43]\nL_pc:\nv_lshlrev_b32 v4, 7, v0\nv_min_u32 v4, L_codeend-L_pc-4, v4\nglobal_load_dword v127, v4, s[42:43]\nL_nopf:")
        else: A("s_getpc_b64 s[42:43]\nL_pc:\nv_lshlrev_b32 v4, 4, v0\nv_min_u32 v4, L_codeend-L_pc-4, v4\nglobal_load_dword v127, v4, s[42:43]")
    A("v_lshrrev_b32 v4, 6, v0\nv_and_b32 v1, 63, v0\nv_readfirstlane_b32 s3, v4")
    A("s_and_b32 s75, s2, 15\ns_lshl_b32 s75, s75, 21\ns_lshr_b32 s73, s2, 4\ns_lshl_b32 s73, s73, 15\ns_or_b32 s75, s75, s73")
    A(f"s_mul_i32 s79, s2, 0x9e3779b1\ns_lshr_b32 s79, s79, 9\ns_and_b32 s79, s79, {o['xm']:#x}\ns_or_b32 s75, s75, s79")
    A("v_bfe_u32 v2, v1, 2, 2\nv_lshlrev_b32 v2, 8, v2\nv_lshrrev_b32 v4, 4, v1\nv_lshl_add_u32 v2, v4, 6, v2")
    A("v_and_b32 v6, 3, v1\nv_lshl_add_u32 v2, v6, 4, v2")
    A("s_mov_b32 s10, 0x2000000\ns_mov_b32 s11, 0x00020000")
    A("s_sub_u32 s76, s3, 4\ns_cbranch_scc1 L_svc")
    A(f"s_lshl_b32 s73, s76, 11\ns_xor_b32 {BS[0]}, s75, s73")
    A("s_waitcnt lgkmcnt(0)")
    A("s_mov_b32 s8, s18\ns_mov_b32 s9, s19")
    nfirst = 2 if o["wa"][1] is None else 1
    if o.get("bar0", 0) < 0: nfirst = 0
    if "nfirst" in o: nfirst = o["nfirst"]
    for n in range(nfirst): kload(n)
    stamp(3, True)
    def common(step, first):
        for k in range(first, 4):
            if step == 12 and o.get("map2") and k >= 2:
                A("s_lshl_b32 s76, s3, 1\ns_add_u32 s76, s76, 16" if k == 2 else "s_add_u32 s76, s76, 1")
            elif k: A(f"s_add_u32 s76, s76, {step}")
            A(f"s_and_b32 s73, s76, 15\ns_lshl_b32 s73, s73, 11\ns_lshr_b32 s42, s76, 4\ns_lshl_b32 s42, s42, 19\ns_or_b32 s73, s73, s42\ns_xor_b32 {BS[k]}, s75, s73")
        A("s_load_dword s64, s[40:41], 0")
        if debug:
            for k in range(1, 10):
                if not (o.get("dbgstart") and k in (3, 5, 7)): A(f"s_mov_b64 s[{80+2*k}:{81+2*k}], 0")
        A("s_mov_b32 s12, s20\ns_mov_b32 s13, s21\ns_mov_b32 s14, 0x2000000\ns_mov_b32 s15, 0x00020000")
        A(f"s_mov_b32 s44, s40\ns_mov_b32 s45, s41\ns_mov_b32 s46, {WS_SIZE:#x}\ns_mov_b32 s47, 0x00020000")
        A("s_mov_b32 s69, 0x05040100\ns_mov_b32 s70, 0x07060302\ns_mov_b32 s71, 0x3e0293ee\ns_mov_b32 s77, 0xffff0000\ns_movk_i32 s66, 0xfff")
        A(f"s_mul_i32 s78, s4, {o['SL']:#x}\ns_getreg_b32 s67, hwreg(HW_REG_XCC_ID, 0, 4)")
    A("s_and_b32 s4, s2, 7\ns_lshr_b32 s5, s2, 3\nv_lshlrev_b32 v3, 4, v1\nv_and_b32 v6, 15, v1")
    common(12, 1)
    if o.get("pol"):
        A(f"s_bfe_u32 s26, s2, 0x30004\ns_mul_i32 s26, s26, {o['SL']:#x}\ns_and_b32 s73, s2, 0x80\ns_add_u32 s26, s26, s73\ns_add_u32 s26, s26, 0x300")
        A("s_cmp_lg_u32 s3, 4\ns_cbranch_scc1 L_nobase2\ns_load_dword s27, s[40:41], s26 glc\nL_nobase2:")
    if o.get("evtab"): A(f"s_lshl_b32 s73, s67, 2\ns_lshr_b32 s62, {sum(c << 4 * i for i, c in enumerate(o['evtab'])):#x}, s73\ns_and_b32 s62, s62, 15")
    if o.get("boost"): A("s_and_b32 s73, s5, 7\ns_cmp_eq_u32 s73, 3")
    A("s_barrier")
    Spos = o["Spos"]
    stream_issue(nfirst, Spos)
    if Spos == 16:
        A(f"v_mov_b32 v8, {L_C3}\nv_mov_b32 v9, 1")
        bump(8, 9)
        stamp(3)
    if o.get("vw"):
        A(f"v_mov_b32 v8, {L_CS}\nv_mov_b32 v9, 1")
        bump(8, 9)
    A(f"s_waitcnt vmcnt({Spos-8})")
    slots = list(o.get("slots", []))
    nxt = [Spos]
    def slot(k):
        if k < len(slots) and slots[k]:
            l = lab("sl")
            A(f"s_cmp_lt_u32 s3, 4\ns_cbranch_scc1 {l}")
            stream_issue(nxt[0], nxt[0] + slots[k]); nxt[0] += slots[k]
            A.label(l)
    A.label("L_sphase")
    stamp(4)
    A(f"v_mov_b32 v7, {L_FLAG}")
    ldswait(7, 1, extra=f"ds_read_b128 v[8:11], v2 offset:{L_QF}", sleep=2, dst=12)
    for t in range(8):
        A(f"v_mfma_f32_16x16x32_bf16 v[{80+4*t}:{83+4*t}], v[{16+4*t}:{19+4*t}], v[8:11], 0")
    A("s_mov_b32 s68, s73")
    tags()
    A("v_lshlrev_b32 v7, 1, v1\ns_lshl_b32 s73, s3, 5\nv_add_u32 v7, s73, v7")
    A(f"v_mov_b32 v8, {L_C0}\nv_mov_b32 v9, 1")
    slot(0)
    for t in range(8): A(f"v_mov_b32_dpp v{112+t}, v{80+4*t} quad_perm:[0,0,0,0] {DPPF}")
    for s in range(1, 4):
        for t in range(8): A(f"v_add_f32_dpp v{112+t}, v{80+4*t+s}, v{112+t} quad_perm:[{s},{s},{s},{s}] {DPPF}")
    slot(1)
    A("v_max3_f32 v120, v112, v113, v114\nv_max3_f32 v121, v115, v116, v117\nv_max3_f32 v120, v120, v118, v119\nv_max_f32 v120, v120, v121")
    xred("v_max_f32", [120], [121])
    A("v_mul_f32 v120, s71, v120")
    for t in range(8): A(f"v_fma_f32 v{112+t}, v{112+t}, s71, -v120")
    for t in range(8): A(f"v_exp_f32 v{112+t}, v{112+t}")
    slot(2)
    A("v_add_f32 v121, v112, v113\nv_add_f32 v122, v114, v115\nv_add_f32 v123, v116, v117\nv_add_f32 v124, v118, v119")
    A("v_add_f32 v121, v121, v122\nv_add_f32 v123, v123, v124\nv_add_f32 v121, v121, v123")
    xred("v_add_f32", [121], [122])
    A("s_mov_b64 exec, 0x1111")
    A(f"ds_write_b64 v7, v[120:121] offset:{L_MLT}")
    bump(8, 9)
    for p in range(4): A(f"v_cvt_pk_bf16_f32 v{124+p}, v{112+2*p}, v{113+2*p}")
    stamp(5)
    A("s_cmp_lt_u32 s3, 4\ns_cbranch_scc1 L_svcmid")
    if Spos < 16:
        stream_issue(nxt[0], 16)
        A(f"v_mov_b32 v8, {L_C3}")
        bump(8, 9)
        stamp(3)
    A(f"v_mov_b32 v8, {L_C1}")
    A.label("L_pphase")
    A("v_and_b32 v0, 3, v1")
    for j in range(4): A(f"v_cmp_eq_u32 s[{48+2*j}:{49+2*j}], {j}, v0")
    for j in range(4):
        for p in range(4): A(f"v_cndmask_b32 v{16+4*j+p}, 0, v{124+p}, s[{48+2*j}:{49+2*j}]")
    A("s_lshl_b32 s73, s3, 11\nv_add_u32 v7, s73, v3")
    for p in range(4):
        A(f"s_waitcnt vmcnt({6-2*p})")
        if o.get("wop") == p:
            A(f"v_add_u32 v10, {L_C4-L_C2}, v8")
            bump(10, 9)
        if p < 3 or not o.get("fast", True):
            for j in range(4):
                a = 48 + 8 * p + j; b = a + 4
                A(f"v_perm_b32 v{80+8*j+p}, v{b}, v{a}, s69\nv_perm_b32 v{84+8*j+p}, v{b}, v{a}, s70")
    def pvm(d):
        hf, j = d >> 2, d & 3
        c = "0" if j == 0 else f"v[{32+4*hf}:{35+4*hf}]"
        A(f"v_mfma_f32_16x16x32_bf16 v[{32+4*hf}:{35+4*hf}], v[{16+4*j}:{19+4*j}], v[{80+4*d}:{83+4*d}], {c}")
    if o.get("fast", True):
        pm = lambda d: A(f"v_perm_b32 v{83+4*d}, v{76+(d>>1)}, v{72+(d>>1)}, s{69+(d&1)}")
        pm(0); pm(1); pm(2)
        for d in range(8):
            pvm(d)
            if d + 3 < 8: pm(d + 3)
        A(f"ds_write_b128 v7, v[32:35] offset:{L_OPL}\nds_write_b128 v7, v[36:39] offset:{L_OPL+1024}")
    else:
        for j in range(4):
            for hf in range(2): pvm(4 * hf + j)
        A(f"ds_write_b128 v7, v[32:35] offset:{L_OPL}\nds_write_b128 v7, v[36:39] offset:{L_OPL+1024}")
    bump(8, 9)
    stamp(6)
    A("s_and_b32 s73, s3, 14\ns_cmp_eq_u32 s73, 6\ns_cbranch_scc1 L_wojob")
    A("s_cmp_eq_u32 s73, 4\ns_cbranch_scc1 L_reader")
    A(f"s_cmp_lg_u32 s3, 8\ns_cbranch_scc1 L_fin\ns_bitcmp{1 - o.get('fpar', o.get('apar', 0))}_b32 s2, 0\ns_cbranch_scc1 L_fin\ns_cmp_ge_u32 s2, 128\ns_cbranch_scc1 L_fin")
    srd(48, 16, 2048); srd(52, 34, 1024); srd(56, 36, 2048)
    A(f"s_lshr_b32 s79, s2, 5\ns_bfe_u32 s42, s2, 0x10004\ns_bfe_u32 s4, s2, 0x30001\ns_mul_i32 s78, s4, {o['SL']:#x}")
    A("v_lshl_add_u32 v126, v0, 2, v4\nv_lshlrev_b32 v126, 1, v126")
    A("s_lshl_b32 s43, s4, 7\ns_lshl_b32 s73, s79, 5\ns_add_u32 s43, s43, s73")
    A("buffer_load_ushort v124, v126, s[52:55], s43 offen")
    A("s_lshl_b32 s73, s42, 10\ns_add_u32 s43, s43, s73")
    A("buffer_load_ushort v125, v126, s[48:51], s43 offen")
    if o.get("outtouch"): A("buffer_load_ushort v123, v126, s[56:59], s43 offen")
    A("v_lshrrev_b32 v127, 2, v1\nv_lshlrev_b32 v127, 9, v127\nv_lshl_add_u32 v127, v0, 4, v127")
    A("s_lshl_b32 s42, s42, 8\ns_lshl_b32 s73, s79, 6\ns_add_u32 s42, s42, s73\ns_add_u32 s42, s42, s78")
    A(f"s_add_u32 s79, s42, {WS_MP:#x}")
    for j in range(4): A(f"v_mov_b32 v{16+j}, 0")
    for t in range(4): A(f"s_add_u32 s{60+t}, s42, {WS_SP+t*8192:#x}")
    mpload = lambda: A("s_mov_b32 exec_hi, 0xffffff\nbuffer_load_dwordx4 v[16:19], v127, s[44:47], s79 offen sc1\ns_mov_b32 exec_hi, -1")
    A("s_mov_b32 s7, 0")
    if "m" in abl: A("s_mov_b32 s7, 1\ns_branch L_fwait")
    if o.get("mpearly"):
        A(f"v_mov_b32 v7, {L_C5}")
        ldswait(7, o["mpearly"], sleep=2, dst=8)
        mpload()
    A("s_waitcnt vmcnt(0)\nv_lshlrev_b32 v124, 16, v124\nv_lshlrev_b32 v125, 16, v125")
    if o.get("mpearly"): A("s_mov_b32 s7, 2\ns_branch L_fmp")
    A.label("L_fwait")
    A(f"v_mov_b32 v7, {L_C6}")
    ldswait(7, 2, sleep=1, dst=8)
    if o.get("fdelay"): A(f"s_sleep {o['fdelay']}")
    A(f"s_mov_b32 s75, {TIMEOUT}\ns_setprio 2")
    A.label("L_fpoll")
    A("s_cmp_eq_u32 s7, 1\ns_cbranch_scc1 L_fnomp")
    mpload()
    A.label("L_fnomp")
    for t in range(4): A(f"buffer_load_dwordx4 v[{48+4*t}:{51+4*t}], v127, s[44:47], s{60+t} offen sc1")
    A("s_cbranch_scc1 L_fchk")
    A("s_waitcnt vmcnt(4)")
    A.label("L_fmp")
    A("s_mov_b32 exec_hi, 0xffffff")
    check(20, 16, 1)
    A("s_mov_b32 exec_hi, -1\ns_cbranch_vccz L_fg")
    A("s_cmp_eq_u32 s7, 2\ns_mov_b32 s7, 0\ns_cbranch_scc1 L_fwait\ns_branch L_fretry")
    A.label("L_fg")
    stamp(7)
    finred(16)
    bf16r([16])
    A("v_add_f32 v16, v16, v124")
    bf16r([16])
    A("v_mul_f32 v17, 0xbfb8aa3b, v16\nv_exp_f32 v17, v17\nv_add_f32 v17, 1.0, v17\nv_rcp_f32 v17, v17\nv_mul_f32 v124, v16, v17")
    bf16r([124])
    A("s_cmp_eq_u32 s7, 2\ns_mov_b32 s7, 1\ns_cbranch_scc1 L_fwait")
    A.label("L_fchk")
    if o.get("fast", True):
        for t in range(4):
            A(f"s_waitcnt vmcnt({3-t})\nv_xor_b32 v{51+4*t}, v5, v{51+4*t}")
            if t == 1: A("v_or_b32 v64, v51, v55")
            if t == 3: A("v_or3_b32 v64, v64, v59, v63\nv_and_b32 v64, s66, v64\nv_cmp_ne_u32 vcc, 0, v64")
            if t:
                for h in range(2): A(f"v_pk_add_f32 v[{48+2*h}:{49+2*h}], v[{48+2*h}:{49+2*h}], v[{48+4*t+2*h}:{49+4*t+2*h}]")
    else:
        A("s_waitcnt vmcnt(0)")
        check(64, 48, 4)
    A("s_cbranch_vccz L_fok")
    A.label("L_fretry")
    A("s_waitcnt vmcnt(0)")
    if o.get("sleep_f"): A(f"s_sleep {o['sleep_f']}")
    A("s_sub_u32 s75, s75, 1\ns_cmp_lg_u32 s75, 0\ns_cbranch_scc1 L_fpoll")
    A.label("L_fok")
    if o.get("padto"): A(f"L_pad:\ns_memrealtime s[82:83]\ns_waitcnt lgkmcnt(0)\ns_sub_u32 s82, s82, s80\ns_cmp_lt_u32 s82, {o['padto']}\ns_cbranch_scc1 L_pad")
    stamp(8)
    if not o.get("fast", True):
        for h in range(2): A(f"v_pk_add_f32 v[{48+2*h}:{49+2*h}], v[{48+2*h}:{49+2*h}], v[{52+2*h}:{53+2*h}]\nv_pk_add_f32 v[{56+2*h}:{57+2*h}], v[{56+2*h}:{57+2*h}], v[{60+2*h}:{61+2*h}]")
        for h in range(2): A(f"v_pk_add_f32 v[{48+2*h}:{49+2*h}], v[{48+2*h}:{49+2*h}], v[{56+2*h}:{57+2*h}]")
    finred(48)
    bf16r([48])
    A("v_mul_f32 v48, v48, v124")
    bf16r([48])
    A("v_add_f32 v48, v48, v125\nv_cvt_pk_bf16_f32 v48, v48, v48")
    A("s_mov_b32 exec_lo, 0x000f000f\ns_mov_b32 exec_hi, 0x000f000f")
    A("buffer_store_short v48, v126, s[56:59], s43 offen" + o.get("outfl", " nt"))
    A("s_cmp_gt_u32 s2, 1\ns_cbranch_scc1 L_fin0")
    A("s_mov_b64 exec, 1\nv_mov_b32 v49, s65\nv_mov_b32 v50, 0\nbuffer_store_dword v49, v50, s[44:47], 0 offen" + o.get("outfl", " nt"))
    A.label("L_fin0")
    A("s_mov_b64 exec, -1")
    A("s_branch L_fin")
    A.label("L_reader")
    A("s_and_b32 s43, s3, 1\ns_lshl_b32 s43, s43, 10\nv_add_u32 v11, s43, v3")
    A(f"s_lshl_b32 s42, s5, 11\ns_add_u32 s42, s42, s78\ns_add_u32 s42, s42, s43\ns_add_u32 s42, s42, {WS_OP:#x}")
    A(f"v_mov_b32 v7, {L_C0}\nv_lshlrev_b32 v10, 5, v6\nv_lshl_add_u32 v10, v4, 3, v10")
    ldswait(7, 16, extra=f"ds_read_b64 v[16:17], v10 offset:{L_MLT}", sleep=2, dst=8)
    A("v_mov_b32 v20, v16")
    rowred("v_max_f32", [20])
    A("v_sub_f32 v16, v16, v20\nv_exp_f32 v14, v16")
    if o.get("mlreader"):
        A("s_cmp_lg_u32 s3, 4\ns_cbranch_scc1 L_rnoml\ns_setprio 3\nv_mul_f32 v21, v14, v17")
        rowred("v_add_f32", [21])
        A("v_mov_b32 v22, 0\nv_mov_b32 v23, s65")
        A(f"s_lshl_b32 s73, s5, 6\ns_add_u32 s73, s73, s78\ns_add_u32 s73, s73, {WS_ML:#x}")
        A("s_mov_b32 exec_lo, 0x10001\ns_mov_b32 exec_hi, 0x10001")
        A("s_cmp_eq_u32 s68, 2\ns_cbranch_scc0 L_rmlfar")
        A("buffer_store_dwordx4 v[20:23], v1, s[44:47], s73 offen\ns_branch L_rmldone")
        A("L_rmlfar:\nbuffer_store_dwordx4 v[20:23], v1, s[44:47], s73 offen sc1\nL_rmldone:\ns_mov_b64 exec, -1\ns_setprio 0")
        stamp(2)
        A("L_rnoml:")
    for w in range(16): A(f"v_mov_b32_dpp v{28+w}, v14 row_newbcast:{w} {DPPF}")
    F = [28 + w for w in range(16)]
    A(f"v_mov_b32 v7, {L_C1}")
    ldswait(7, 12, extra="\n".join(f"ds_read_b128 v[{48+4*w}:{51+4*w}], v11 offset:{L_OPL+2048*w}" for w in range(4, 16)), sleep=2, dst=8)
    idx_first[0] = 4
    wsum(24, 48, list(range(4, 16)), F)
    stamp(7)
    A(f"v_mov_b32 v7, {L_C2}")
    A("s_setprio 2")
    ldswait(7, 4, extra="\n".join(f"ds_read_b128 v[{48+4*w}:{51+4*w}], v11 offset:{L_OPL+2048*w}" for w in range(4)), sleep=0, dst=8)
    wsum(24, 48, list(range(4)), F)
    A("v_bfi_b32 v27, s66, v5, v27")
    if o["local"]:
        A("s_cmp_eq_u32 s68, 2\ns_cbranch_scc0 L_opfar")
        A("buffer_store_dwordx4 v[24:27], v3, s[44:47], s42 offen" + o.get("opfl", ""))
        stamp(8)
        A("s_branch L_fin")
    A.label("L_opfar")
    A("buffer_store_dwordx4 v[24:27], v3, s[44:47], s42 offen sc1")
    stamp(8)
    A("s_branch L_fin")
    A.label("L_wojob")
    assert o["woend"]
    A("s_lshr_b32 s79, s5, 3\ns_and_b32 s43, s3, 1")
    A("v_and_b32 v8, 7, v6\nv_lshlrev_b32 v8, 2, v8\nv_lshrrev_b32 v9, 1, v4\nv_lshrrev_b32 v10, 2, v6\nv_and_b32 v10, 2, v10\nv_xor_b32 v10, v4, v10\nv_add_u32 v8, v8, v10")
    A("v_lshlrev_b32 v8, 6, v8\nv_and_b32 v10, 1, v4")
    A("v_lshlrev_b32 v11, 11, v4\nv_lshl_add_u32 v11, v6, 4, v11")
    A("v_lshlrev_b32 v12, 7, v10\nv_lshl_add_u32 v12, v6, 3, v12\nv_lshl_add_u32 v12, v9, 2, v12")
    A("v_bfe_u32 v13, v1, 2, 1\nv_lshlrev_b32 v13, 7, v13\nv_lshl_add_u32 v13, v4, 4, v13")
    A("s_lshl_b32 s73, s3, 8\nv_add_u32 v12, s73, v12\nv_add_u32 v13, s73, v13")
    if o["wo4"]:
        A("v_bfe_u32 v14, v1, 3, 1\nv_lshl_add_u32 v13, v14, 6, v13\nv_and_b32 v9, 7, v1\nv_lshlrev_b32 v15, 14, v4\nv_lshl_add_u32 v15, v14, 16, v15\nv_lshl_add_u32 v15, v9, 4, v15")
        A("v_lshlrev_b32 v10, 8, v10\nv_lshl_add_u32 v10, v6, 5, v10\nv_lshrrev_b32 v0, 1, v4\nv_lshl_add_u32 v10, v0, 4, v10")
        A("v_bfe_u32 v0, v10, 4, 2\nv_lshlrev_b32 v0, 3, v0\nv_min_u32 v0, 20, v0\nv_lshrrev_b32_e64 v0, v0, s65")
    else: A("v_lshlrev_b32 v15, 14, v4\nv_lshl_add_u32 v15, v6, 3, v15")
    srd(52, 24, 0x400000)
    wo_cg("s7")
    A("s_lshl_b32 s48, s4, 19\ns_lshl_b32 s73, s79, 17\ns_add_u32 s48, s48, s73\ns_lshl_b32 s73, s43, 12\ns_add_u32 s48, s48, s73\ns_lshl_b32 s73, s7, 7\ns_add_u32 s48, s48, s73")
    A("s_add_u32 s49, s48, 0x2000\ns_add_u32 s50, s48, 0x10000\ns_add_u32 s51, s48, 0x12000")
    A(f"s_mul_i32 s7, s7, {o['SL']:#x}")
    A("s_lshl_b32 s76, s4, 3\ns_lshl_b32 s73, s79, 1\ns_add_u32 s76, s76, s73\ns_add_u32 s76, s76, s43")
    A(f"s_lshl_b32 s76, s76, 9\ns_add_u32 s76, s76, s7\ns_add_u32 s76, s76, {WS_SP:#x}")
    A(f"s_lshl_b32 s73, s79, 4\ns_add_u32 s6, s78, s73\ns_add_u32 s6, s6, {WS_ML:#x}")
    A(f"s_lshl_b32 s73, s43, 10\ns_add_u32 s42, s78, s73\ns_lshl_b32 s73, s79, 8\ns_add_u32 s42, s42, s73")
    for t in range(8): A(f"s_add_u32 s{56+t}, s42, {WS_OP+t*8192:#x}")
    if "wop" in o and o.get("mlfirst", True):
        A(f"v_mov_b32 v7, {L_C5}")
        ldswait(7, 4, sleep=2, dst=9)
        A("buffer_load_dwordx4 v[120:123], v8, s[44:47], s6 offen sc1")
    A(f"v_mov_b32 v7, {L_C4 if 'wop' in o else L_C3 if o['woc3'] else L_C5}")
    ldswait(7, o["woc3"] or o["woend"], sleep=1, dst=9)
    stamp(1)
    mlload = lambda: A("buffer_load_dwordx4 v[120:123], v8, s[44:47], s6 offen sc1")
    if not ("wop" in o and o.get("mlfirst", True)): mlload()
    if o["wo4"]:
        for i in range(8): A(f"buffer_load_dwordx4 v[{48+4*i}:{51+4*i}], {'v3' if 'w' in abl else 'v15'}, s[52:55], {0 if 'w' in abl else f's{48+(i>>2)}'} offen offset:{(i&3)*1024}{'' if 'w' in abl else NT}")
    else:
      for ks in range(2):
        for i in range(8):
            r = 48 + (ks * 8 + i) * 2
            A(f"buffer_load_dwordx2 v[{r}:{r+1}], v15, s[52:55], s{48+2*ks+(i>>2)} offen offset:{(i&3)*1024}{NT}")
    A(f"s_mov_b32 s7, 0\ns_waitcnt vmcnt({8 if o['wo4'] else 16})\nv_cmp_ne_u32 vcc, s65, v123\ns_cbranch_vccnz L_wperm")
    A.label("L_wfac")
    A("v_mov_b32 v124, v120")
    rowred("v_max_f32", [124])
    A("v_sub_f32 v120, v120, v124\nv_exp_f32 v120, v120\nv_mul_f32 v121, v120, v121")
    rowred("v_add_f32", [121])
    A("v_rcp_f32 v121, v121\nv_mul_f32 v14, v120, v121")
    for t in range(8): A(f"v_mov_b32_dpp v{112+t}, v14 row_newbcast:{t} {DPPF}")
    stamp(7)
    A("s_cmp_eq_u32 s7, 2\ns_mov_b32 s7, 1\ns_cbranch_scc1 L_wchk2")
    A.label("L_wperm")
    if not o["wo4"]:
        A("s_waitcnt vmcnt(8)")
        tile_perm(48, 0, 80)
    A("s_waitcnt vmcnt(0)\ns_setprio 2")
    def oloads():
        l = lab("nml")
        A(f"s_cmp_eq_u32 s7, 1\ns_cbranch_scc1 {l}")
        mlload()
        A.label(l)
        for t in range(8): A(f"buffer_load_dwordx4 v[{16+4*t}:{19+4*t}], v11, s[44:47], s{56+t} offen sc1")
    oloads()
    if o["wo4"]: perm8(48, 80)
    else: tile_perm(48, 1, 96)
    stamp(2)
    A(f"s_mov_b32 s75, {TIMEOUT}\ns_branch L_wchk")
    A.label("L_wpoll2")
    if o["sleep_t"]: A(f"s_sleep {o['sleep_t']}")
    if o.get("ohint"):
        A("v_and_b32 v9, 31, v1\nv_lshlrev_b32 v9, 11, v9\nv_and_b32 v14, 3, v1\nv_lshl_add_u32 v9, v14, 4, v9\ns_mov_b32 exec_hi, 0")
        A.label("L_whint")
        A("buffer_load_dword v14, v9, s[44:47], s56 offen offset:12 sc1\ns_waitcnt vmcnt(0)")
        A("v_xor_b32 v14, v5, v14\nv_and_b32 v14, s66, v14\nv_cmp_ne_u32 vcc, 0, v14\ns_cbranch_vccz L_whok")
        if o.get("sleep_hint"): A(f"s_sleep {o['sleep_hint']}")
        A("s_sub_u32 s75, s75, 1\ns_cmp_gt_u32 s75, 1\ns_cbranch_scc1 L_whint")
        A("L_whok:\ns_mov_b32 exec_hi, -1")
    oloads()
    A.label("L_wchk")
    A("s_cmp_eq_u32 s7, 1\ns_cbranch_scc1 L_wchk2")
    A("s_waitcnt vmcnt(8)\nv_cmp_ne_u32 vcc, s65, v123\ns_mov_b32 s7, 2\ns_cbranch_vccz L_wfac")
    A("s_mov_b32 s7, 0\ns_waitcnt vmcnt(0)\ns_branch L_wretry")
    A.label("L_wchk2")
    if o.get("fast", True):
        idx_first[0] = 0
        for t in range(8):
            A(f"s_waitcnt vmcnt({7-t})\nv_xor_b32 v{19+4*t}, v5, v{19+4*t}")
            wsum(48, 16, [t], [112 + u for u in range(8)])
            if t == 1: A("v_or_b32 v14, v19, v23")
            elif t & 1: A(f"v_or3_b32 v14, v14, v{15+4*t}, v{19+4*t}")
        A("v_and_b32 v14, s66, v14\nv_cmp_ne_u32 vcc, 0, v14")
    else:
        A("s_waitcnt vmcnt(0)")
        check(14, 16, 8)
    A("s_cbranch_vccz L_wok")
    A.label("L_wretry")
    A("s_sub_u32 s75, s75, 1\ns_cmp_lg_u32 s75, 0\ns_cbranch_scc1 L_wpoll2")
    A.label("L_wok")
    stamp(8)
    if o.get("c6early"):
        A(f"v_mov_b32 v7, {L_C6}\nv_mov_b32 v9, 1")
        bump(7, 9)
    idx_first[0] = 0
    if not o.get("fast", True): wsum(48, 16, list(range(8)), [112 + t for t in range(8)])
    A("v_permlane32_swap_b32 v48, v50\nv_permlane32_swap_b32 v49, v51\nv_add_f32 v48, v48, v50\nv_add_f32 v49, v49, v51\nv_cvt_pk_bf16_f32 v48, v48, v49")
    A(f"ds_write_b32 v12, v48 offset:{L_SCR}")
    if o["wo4"]:
        A(f"ds_read_b128 v[52:55], v13 offset:{L_SCR}\ns_waitcnt lgkmcnt(0)")
        for d in (0, 4, 1, 5, 2, 6, 3, 7): A(f"v_mfma_f32_16x16x32_bf16 v[{16+4*d}:{19+4*d}], v[52:55], v[{80+4*d}:{83+4*d}], 0")
        for d in (0, 4, 1, 5, 2, 6, 3, 7): A(f"v_mov_b32_dpp v{16+4*d}, v{17+4*d} row_ror:8 row_mask:0xc bank_mask:0xf")
        for d in range(4): A(f"v_permlane32_swap_b32 v{16+4*d}, v{32+4*d}")
        for d in range(4): A(f"v_add_f32 v{56+d}, v{16+4*d}, v{32+4*d}")
        A("v_bfi_b32 v59, s66, v0, v59")
        A("s_mov_b32 exec_lo, 0x00ff00ff\ns_mov_b32 exec_hi, 0x00ff00ff")
        A("buffer_store_dwordx4 v[56:59], v10, s[44:47], s76 offen sc1\ns_mov_b64 exec, -1")
    else:
        A(f"ds_read_b128 v[52:55], v13 offset:{L_SCR}\nds_read_b128 v[56:59], v13 offset:{L_SCR+64}")
        A("s_waitcnt lgkmcnt(0)")
        tile_mfma(60, 52, 80, True)
        tile_mfma(60, 56, 96, False)
        publish512(60, 76)
    if not o.get("c6early"):
        A(f"v_mov_b32 v7, {L_C6}\nv_mov_b32 v9, 1")
        bump(7, 9)
    A.label("L_fin")
    if o.get("dbgtime"):
        A("s_cmp_lg_u32 s3, 8\ns_cbranch_scc1 L_end")
        srd(48, 38, 256)
        A("s_memrealtime s[82:83]\ns_waitcnt lgkmcnt(0)\ns_not_b32 s80, s80\nv_mov_b32 v16, s80\nv_mov_b32 v17, s82\nv_mov_b32 v7, s67\nv_lshlrev_b32 v7, 3, v7\ns_mov_b64 exec, 1")
        A("buffer_atomic_umax v16, v7, s[48:51], 0 offen sc1\nbuffer_atomic_umax v17, v7, s[48:51], 0 offen offset:4 sc1")
    if debug:
        stamp(9)
        A("s_setprio 0\nL_dbgw:\ns_sleep 32\ns_memrealtime s[42:43]\ns_waitcnt lgkmcnt(0)\ns_sub_u32 s42, s42, s80\ns_cmp_lt_u32 s42, 2500\ns_cbranch_scc1 L_dbgw")
        for k in range(10): A(f"v_mov_b32 v{16+k}, s{80+2*k}")
        A("v_mov_b32 v26, s67\nv_mov_b32 v27, s75")
        A(f"s_lshl_b32 s73, s2, 4\ns_add_u32 s73, s73, s3\ns_lshl_b32 s73, s73, 6\ns_add_u32 s73, s73, {WS_STAMP:#x}")
        A("v_mov_b32 v7, 0\ns_mov_b64 exec, 1")
        for q in range(3): A(f"buffer_store_dwordx4 v[{16+4*q}:{19+4*q}], v7, s[44:47], s73 offen offset:{16*q}")
    A.label("L_end")
    A("s_endpgm")

    H = 112 if o.get("hpre") else 16
    def hpart():
        A(f"s_lshl_b32 s73, s7, 12\ns_add_u32 s42, s78, s73\ns_add_u32 s42, s42, {WS_HX:#x}")
        if o["hdelay"]: A(f"s_sleep {o['hdelay']}")
        stamp(1)
        def hloads():
            for t in range(4): A(f"buffer_load_dwordx4 v[{H+4*t}:{H+3+4*t}], v3, s[44:47], s42 offen offset:{t*1024} sc1")
        if "h" not in abl: poll(hloads, lambda: check(10, H, 4), sleep=o["sleep_h"])
        stamp(3)
        for e in range(4): A(f"v_add_f32 v{H+e}, v{H+e}, v{H+4+e}\nv_add_f32 v{H+8+e}, v{H+8+e}, v{H+12+e}")
        A(f"v_permlane32_swap_b32 v{H}, v{H+2}\nv_permlane32_swap_b32 v{H+1}, v{H+3}\nv_permlane32_swap_b32 v{H+8}, v{H+10}\nv_permlane32_swap_b32 v{H+9}, v{H+11}")
        A(f"v_add_f32 v{H}, v{H}, v{H+2}\nv_add_f32 v{H+1}, v{H+1}, v{H+3}\nv_add_f32 v{H+2}, v{H+8}, v{H+10}\nv_add_f32 v{H+3}, v{H+9}, v{H+11}")
        R4 = [H, H + 1, H + 2, H + 3]
        bf16r(R4)
        unpack(H + 4, 14, 2)
        for r in R4: A(f"v_add_f32 v{r}, v{r}, v{r+4}")
        bf16r(R4)
        A("s_mov_b32 s73, 0x3d372713")
        for r in R4: A(f"v_mul_f32 v{r+4}, v{r}, v{r}")
        for r in R4: A(f"v_fma_f32 v{r+4}, v{r+4}, s73, 1.0")
        for r in R4: A(f"v_mul_f32 v{r+4}, v{r+4}, v{r}")
        for r in R4: A(f"v_mul_f32 v{r+4}, 0xc0135761, v{r+4}")
        for r in R4: A(f"v_exp_f32 v{r+4}, v{r+4}")
        for r in R4: A(f"v_add_f32 v{r+4}, 1.0, v{r+4}")
        for r in R4: A(f"v_rcp_f32 v{r+4}, v{r+4}")
        for r in R4: A(f"v_mul_f32 v{r}, v{r}, v{r+4}")
        A(f"v_cvt_pk_bf16_f32 v{H}, v{H}, v{H+1}\nv_cvt_pk_bf16_f32 v{H+1}, v{H+2}, v{H+3}")
        A("v_and_b32 v10, 1, v4\nv_lshl_add_u32 v10, v10, 8, v13")
        A(f"ds_write_b32 v10, v{H} offset:{L_SCR}\nds_write_b32 v10, v{H+1} offset:{L_SCR+128}")
    A.label("L_svcmid")
    A("s_cmp_eq_u32 s62, 0\ns_cbranch_scc1 L_svcmid2")
    A("s_cmp_eq_u32 s62, 1\ns_cbranch_scc1 L_bjob")
    A("s_cmp_eq_u32 s68, 2\ns_cbranch_scc1 L_svcmid2\ns_mov_b32 exec_lo, 0x00ff00ff\ns_mov_b32 exec_hi, 0x00ff00ff")
    A("buffer_store_dwordx4 v[48:51], v52, s[44:47], s6 offen sc1\ns_mov_b64 exec, -1\ns_branch L_svcmid2")
    A.label("L_bjob")
    if H == 16: hpart()
    A("s_waitcnt vmcnt(0)")
    for i in range(16): A(f"ds_read_b128 v[{48+4*i}:{51+4*i}], v3 offset:{L_BT+1024*i}")
    A(f"s_movk_i32 s61, {L_SCR-L_XS}\nv_bfe_u32 v7, v1, 2, 1\nv_lshlrev_b32 v7, 8, v7\ns_waitcnt lgkmcnt(0)\ns_branch L_gemv2")
    A.label("L_svcmid2")
    A("v_mov_b32 v9, 1")
    hold = o.get("hold")
    if hold:
        A("s_cmp_lg_u32 s3, 0\ns_cbranch_scc1 L_noml")
        A(f"v_mov_b32 v7, {L_C3}")
        ldswait(7, hold[0], sleep=1, dst=8)
        A(f"s_mov_b32 s60, 1\ns_atomic_add s60, s[40:41], s26 glc\ns_mov_b32 s61, {hold[2]}\nv_mov_b32 v7, {L_C1}\ns_waitcnt lgkmcnt(0)\ns_add_u32 s60, s60, 1")
        if debug: A("s_sub_u32 s86, s60, s27")
        A.label("L_hold")
        A(f"s_sub_u32 s60, s60, s27\ns_cmp_ge_u32 s60, {hold[1]}\ns_cbranch_scc1 L_hgo")
        A("ds_read_b32 v8, v7\ns_load_dword s60, s[40:41], s26 glc\ns_waitcnt lgkmcnt(0)\nv_readfirstlane_b32 s73, v8")
        A(f"s_cmp_lt_u32 s73, {hold[3] if len(hold) > 3 else 12}\ns_cbranch_scc1 L_hold\ns_sub_u32 s61, s61, 1\ns_cbranch_scc0 L_hold")
        A.label("L_hgo")
        A(f"v_mov_b32 v7, {L_C3}\nv_mov_b32 v8, 16\ns_mov_b64 exec, 1\nds_add_u32 v7, v8\ns_mov_b64 exec, -1")
    A.label("L_noml")
    stamp(7)
    nv0 = 0
    if o.get("vw"):
        nv0 = o["vw"][1]
        A(f"v_mov_b32 v7, {L_CS}")
        ldswait(7, o["vw"][0], sleep=1, dst=8)
        for t in range(nv0):
            if t >= 2: A("s_waitcnt vmcnt(1)")
            vload(t)
    thr = [t + (16 if hold else 0) for t in o["thr"]]
    A(f"s_mov_b32 s42, {thr[0] | thr[1] << 8 | thr[2] << 16 | thr[3] << 24:#x}\ns_lshl_b32 s73, s3, 3\ns_lshr_b32 s42, s42, s73\ns_and_b32 s42, s42, 0xff")
    A(f"v_mov_b32 v7, {L_C3}")
    ldswait(7, "s42", sleep=1, dst=8)
    A(f"s_setprio {o.get('v2prio', 1)}")
    for t in range(nv0, 8): vload(t)
    A(f"s_setprio 3\nv_mov_b32 v8, {L_C5}")
    bump(8, 9)
    A(f"v_mov_b32 v8, {L_C2}")
    stamp(8)
    A("s_branch L_pphase")

    A.label("L_svc")
    A(f"v_lshlrev_b32 v6, 2, v1\nv_mov_b32 v7, 0\nds_write_b32 v6, v7 offset:{L_FLAG}")
    A("s_and_b32 s4, s2, 7\ns_lshr_b32 s5, s2, 3\nv_lshlrev_b32 v3, 4, v1\nv_and_b32 v6, 15, v1")
    A("s_lshl_b32 s76, s3, 2\ns_add_u32 s76, s76, 48\ns_mov_b32 s62, 0\ns_mov_b32 s63, 0\nv_mov_b32 v52, 0")
    A("v_bfe_u32 v7, v1, 3, 1\nv_lshl_add_u32 v7, v7, 2, v4\nv_and_b32 v0, 7, v1")
    A("s_cmp_ge_u32 s3, 2\ns_cbranch_scc1 L_svc2")
    A("s_cmp_eq_u32 s3, 1\ns_cbranch_scc1 L_w1")
    A("s_mov_b32 s54, 0x400000\ns_movk_i32 s43, 0x2000\ns_mov_b32 s63, 1")
    A("s_lshr_b32 s79, s5, 3\ns_and_b32 s73, s5, 7\ns_lshl_b32 s73, s73, 7\ns_lshl_b32 s68, s4, 10\ns_add_u32 s68, s68, s73")
    A(f"s_mul_i32 s6, s4, {o['SL']:#x}\ns_lshl_b32 s73, s5, 9\ns_add_u32 s6, s6, s73\ns_add_u32 s6, s6, {WS_QX+WS_LOC:#x}")
    A("s_waitcnt lgkmcnt(0)\ns_mov_b32 s52, s22\ns_mov_b32 s53, s23")
    A("s_branch L_gemv")
    A.label("L_w1")
    if "A" in abl: A("s_branch L_svc2")
    jobid("L_svc2", False)
    A(f"s_mov_b32 s54, {512*3584:#x}\ns_movk_i32 s43, 3584\ns_mov_b32 s63, 2")
    A("s_lshl_b32 s68, s79, 8\ns_and_b32 s73, s5, 4\ns_lshl_b32 s73, s73, 5\ns_add_u32 s68, s68, s73\ns_and_b32 s79, s5, 3")
    A(f"s_mul_i32 s6, s4, {o['SL']:#x}\ns_lshl_b32 s73, s7, 12\ns_add_u32 s6, s6, s73")
    A(f"s_and_b32 s73, s5, 7\ns_lshl_b32 s73, s73, 9\ns_add_u32 s6, s6, s73\ns_add_u32 s6, s6, {WS_HX:#x}")
    A("s_waitcnt lgkmcnt(0)\ns_mov_b32 s52, s28\ns_mov_b32 s53, s29")
    A.label("L_gemv")
    srd(48, 16, 2048)
    A("buffer_load_dwordx4 v[8:11], v3, s[48:51], 0 offen\nbuffer_load_dwordx4 v[12:15], v3, s[48:51], 0 offen offset:1024")
    A("s_mov_b32 s55, 0x00020000")
    A("s_lshl_b32 s73, s43, 3\nv_mul_u32_u24 v7, s73, v7\nv_lshl_add_u32 v7, v0, 4, v7")
    A("s_lshl_b32 s73, s43, 7\ns_mul_i32 s73, s73, s79\ns_add_u32 s42, s68, s73\ns_mul_i32 s60, s43, 57")
    for ks in range(2):
        for i in range(8):
            r = 48 + (ks * 8 + i) * 4
            if "t" not in abl: A(f"buffer_load_dwordx4 v[{r}:{r+3}], v7, s[52:55], s42 offen{NT}")
            if (ks, i) != (1, 7): A(f"s_add_u32 s42, s42, {'s60' if i == 7 else 's43'}")
    A.label("L_svc2")
    A("s_waitcnt lgkmcnt(0)\ns_mov_b32 s8, s18\ns_mov_b32 s9, s19")
    A("s_barrier")
    common(1, 0)
    if o.get("hold"):
        A(f"s_bfe_u32 s26, s2, 0x30004\ns_mul_i32 s26, s26, {o['SL']:#x}\ns_and_b32 s73, s2, 0x80\ns_add_u32 s26, s26, s73\ns_add_u32 s26, s26, 0x200")
        A("s_cmp_lg_u32 s3, 0\ns_cbranch_scc1 L_nobase\ns_load_dword s27, s[40:41], s26 glc\nL_nobase:")
    A("s_cmp_eq_u32 s63, 0\ns_cbranch_scc1 L_wk")
    A("s_lshl_b32 s61, s3, 11\nv_add_u32 v0, s61, v3")
    A("s_waitcnt vmcnt(16)")
    stamp(1)
    A.label("L_ln")
    layernorm(8, 16, 32)
    A("s_sub_u32 s63, s63, 1\ns_cmp_lg_u32 s63, 0\ns_cbranch_scc1 L_ln")
    A(f"ds_write_b128 v0, v[8:11] offset:{L_XS}\nds_write_b128 v0, v[12:15] offset:{L_XS+1024}")
    A("v_bfe_u32 v7, v1, 2, 1\nv_lshlrev_b32 v7, 10, v7\ns_lshl_b32 s73, s79, 8\ns_add_u32 s61, s61, s73")
    A("s_waitcnt lgkmcnt(0)")
    tags()
    A.label("L_gemv2")
    A("v_bfe_u32 v0, v1, 3, 1\nv_lshl_add_u32 v7, v0, 6, v7\nv_lshl_add_u32 v7, v4, 4, v7\nv_add_u32 v7, s61, v7")
    for ks in range(2): A(f"ds_read_b128 v[{8+4*ks}:{11+4*ks}], v7 offset:{L_XS+128*ks}")
    for ks in range(2):
        A(f"s_waitcnt vmcnt({8-8*ks})")
        perm8(48 + 32 * ks, 16)
        if ks == 0: A("s_waitcnt lgkmcnt(0)")
        for d in range(8):
            c = "0" if ks == 0 else f"v[{48+4*d}:{51+4*d}]"
            A(f"v_mfma_f32_16x16x32_bf16 v[{48+4*d}:{51+4*d}], v[{8+4*ks}:{11+4*ks}], v[{16+4*d}:{19+4*d}], {c}")
    A("v_and_b32 v7, 1, v4\nv_lshlrev_b32 v7, 8, v7\nv_lshl_add_u32 v7, v6, 5, v7\nv_lshrrev_b32 v0, 1, v4\nv_lshl_add_u32 v7, v0, 4, v7")
    A("v_bfe_u32 v0, v7, 4, 2\nv_lshlrev_b32 v0, 3, v0\nv_min_u32 v0, 20, v0\nv_lshrrev_b32_e64 v0, v0, s65")
    for d in range(8): A(f"v_mov_b32_dpp v{48+4*d}, v{49+4*d} row_ror:8 row_mask:0xc bank_mask:0xf")
    for d in range(4): A(f"v_permlane32_swap_b32 v{48+4*d}, v{64+4*d}")
    for d in range(4): A(f"v_add_f32 v{48+d}, v{48+4*d}, v{64+4*d}")
    A("v_bfi_b32 v51, s66, v0, v51\nv_mov_b32 v52, v7")
    A("s_mov_b32 exec_lo, 0x00ff00ff\ns_mov_b32 exec_hi, 0x00ff00ff")
    A("s_cmp_lt_u32 s3, 2\ns_cbranch_scc1 L_qpub")
    if o.get("mpwait"):
        A(f"s_mov_b64 exec, -1\nv_mov_b32 v10, {L_C3}")
        ldswait(10, o["mpwait"], sleep=2, dst=11)
        A("s_mov_b32 exec_lo, 0x00ff00ff\ns_mov_b32 exec_hi, 0x00ff00ff")
    if "m" not in abl: A("buffer_store_dwordx4 v[48:51], v52, s[44:47], s6 offen sc1")
    A("s_mov_b64 exec, -1")
    stamp(2)
    A("s_branch L_svcmid2")
    A.label("L_qpub")
    if "s" not in abl: A("buffer_store_dwordx4 v[48:51], v52, s[44:47], s6 offen")
    A("s_mov_b64 exec, -1")
    stamp(2)
    A("s_cmp_eq_u32 s3, 1\ns_cselect_b32 s62, 3, 0\ns_cbranch_scc1 L_w01k")
    A("v_mov_b32 v12, s67\nv_mov_b32 v15, s65")
    A(f"s_lshl_b32 s42, s5, 4\ns_add_u32 s42, s42, s78\ns_add_u32 s42, s42, {WS_XI+WS_LOC:#x}\ns_mov_b64 exec, 1")
    if "s" not in abl: A("buffer_store_dwordx4 v[12:15], v3, s[44:47], s42 offen")
    A("s_mov_b64 exec, -1")
    A.label("L_w01k")
    svc_k(o["W0k"])
    A("s_waitcnt vmcnt(0)\ns_branch L_sphase")
    A.label("L_wk")
    if o.get("tlb"):
        A("s_cmp_lg_u32 s3, 2\ns_cbranch_scc1 L_notlb\ns_mov_b64 exec, 1\nv_mov_b32 v8, 0\ns_lshl_b32 s73, s4, 19\nv_mov_b32 v9, s73")
        if "v" in o["tlb"]: A(f"buffer_load_dword v80, v8, s[12:15], {BS[0]} offen nt")
        if "w" in o["tlb"]: A("global_load_dword v81, v9, s[24:25] nt")
        if "o" in o["tlb"]: A("global_load_dword v82, v8, s[36:37]\nglobal_load_dword v83, v8, s[34:35]")
        if "m" in o["tlb"]: A("global_load_dword v84, v8, s[32:33]\nglobal_load_dword v85, v8, s[30:31]\nglobal_load_dword v86, v8, s[40:41]")
        A("s_mov_b64 exec, -1\nL_notlb:")
    if o.get("btstart"):
        A("s_cmp_eq_u32 s3, 3\ns_cbranch_scc1 L_w3\nL_wk1:")
        svc_k(o["W23k"])
        A("s_cmp_eq_u32 s3, 2\ns_cbranch_scc1 L_qg\ns_branch L_wk2\nL_w3:")
    else:
        svc_k(o["W23k"])
        A("s_cmp_eq_u32 s3, 2\ns_cbranch_scc1 L_qg")
        A("s_cmp_lg_u32 s3, 3\ns_cbranch_scc1 L_wk2")
    if "B" in abl: A("s_branch L_wk2")
    jobid("L_wk1" if o.get("btstart") else "L_wk2", True)
    srd(52, 32, 1792 * 1024); srd(56, 30, 3584)
    A(f"s_mov_b32 s62, 1\ns_add_u32 s73, s5, {o.get('brot', 2)}\ns_and_b32 s73, s73, 7\ns_lshl_b32 s42, s73, 7")
    A(f"s_mul_i32 s6, s73, {o['SL']:#x}\ns_lshl_b32 s73, s79, 9\ns_add_u32 s6, s6, s73\ns_add_u32 s6, s6, {WS_MP:#x}")
    A("s_lshl_b32 s73, s79, 17\ns_add_u32 s42, s42, s73\nv_lshlrev_b32 v7, 13, v7\nv_lshl_add_u32 v7, v0, 4, v7")
    A("v_lshrrev_b32 v13, 1, v4\nv_lshlrev_b32 v13, 2, v13\nv_lshl_add_u32 v13, v6, 3, v13")
    if o.get("btwait", True): A("s_waitcnt vmcnt(0)")
    for grp in range(4):
        if o.get("btwin") and grp >= o["btwin"]: A(f"s_waitcnt vmcnt({4*o['btwin']-4})")
        A(f"s_mov_b32 m0, {L_BT+4096*grp}\ns_add_u32 s73, s42, {(64*(grp>>1)+4*(grp&1))*1024}")
        for i in range(4):
            if "b" not in abl: A(f"buffer_load_dwordx4 v7, s[52:55], s73 offen offset:{1024*i}{NT} lds")
    A("s_lshl_b32 s73, s79, 8")
    A("buffer_load_dword v14, v13, s[56:59], s73 offen\nbuffer_load_dword v15, v13, s[56:59], s73 offen offset:128")
    if o.get("btstart"):
        A(f"s_waitcnt vmcnt({o['btstart']-1})")
        svc_k(o.get("W3k", 8))
        if o.get("hwait", True): A("s_waitcnt vmcnt(0)")
    if H != 16:
        A("s_waitcnt lgkmcnt(0)")
        tags()
        hpart()
        A("s_branch L_sphase")
    else: A("s_waitcnt vmcnt(18)\ns_branch L_sphase")
    A.label("L_wk2")
    A("s_waitcnt vmcnt(0)\ns_branch L_sphase")
    A.label("L_qg")
    A("v_lshlrev_b32 v7, 9, v4\nv_lshl_add_u32 v7, v6, 4, v7\nv_and_b32 v9, 0x1ff, v3")
    A(f"s_and_b32 s73, s5, 1\ns_lshl_b32 s73, s73, 8\ns_add_u32 s42, s78, s73\ns_add_u32 s43, s78, {WS_XI+WS_LOC:#x}")
    for kq in range(4): A(f"s_add_u32 s{56+kq}, s42, {WS_QX+WS_LOC+kq*4096:#x}")
    A("s_waitcnt vmcnt(0) lgkmcnt(0)")
    tags()
    if o["qdelay"]: A(f"s_sleep {o['qdelay']}")
    stamp(1)
    def qloads():
        for kq in range(4):
            for u in range(2):
                r = 80 + (kq * 2 + u) * 4
                A(f"buffer_load_dwordx4 v[{r}:{r+3}], v7, s[44:47], s{56+kq} offen offset:{u*2048} sc1")
        A("buffer_load_dwordx4 v[112:115], v9, s[44:47], s43 offen sc1")
    A(f"s_mov_b32 s75, {TIMEOUT}\ns_mov_b32 s7, 0")
    if "q" in abl: A("s_mov_b32 s43, 2\ns_branch L_qsum")
    A.label("L_qpoll")
    qloads()
    A("s_waitcnt vmcnt(0)")
    check(8, 80, 8, full=[115])
    A("s_cbranch_vccz L_qok")
    A("s_sub_u32 s75, s75, 1\ns_cmp_eq_u32 s75, 0\ns_cbranch_scc1 L_qok")
    A(f"s_sleep {o['sleep_q']}\ns_cmp_gt_u32 s75, {TIMEOUT - o.get('qtries', 4)}\ns_cbranch_scc1 L_qpoll")
    for r in (56, 57, 58, 59, 43): A(f"s_xor_b32 s{r}, s{r}, {WS_LOC:#x}")
    A("s_cmp_lg_u32 s7, 0\ns_cbranch_scc1 L_qpoll\ns_mov_b32 s7, 1")
    A.label("L_qrep")
    A(f"s_lshl_b32 s61, s5, 9\ns_add_u32 s61, s61, s78\ns_add_u32 s61, s61, {WS_QX:#x}\ns_add_u32 s60, s61, {WS_LOC:#x}\ns_mov_b32 s63, {TIMEOUT}")
    A.label("L_qrep2")
    A("buffer_load_dwordx4 v[116:119], v9, s[44:47], s60 offen sc1\ns_waitcnt vmcnt(0)")
    A("v_xor_b32 v8, v5, v119\nv_and_b32 v8, s66, v8\nv_cmp_ne_u32 vcc, 0, v8\ns_cbranch_vccz L_qrep3")
    A("s_sub_u32 s63, s63, 1\ns_cmp_lg_u32 s63, 0\ns_cbranch_scc1 L_qrep2")
    A.label("L_qrep3")
    A("buffer_store_dwordx4 v[116:119], v9, s[44:47], s61 offen sc1")
    A("v_mov_b32 v120, s67\nv_mov_b32 v123, s65")
    A(f"s_lshl_b32 s61, s5, 4\ns_add_u32 s61, s61, s78\ns_add_u32 s61, s61, {WS_XI:#x}\ns_mov_b64 exec, 1")
    A("buffer_store_dwordx4 v[120:123], v3, s[44:47], s61 offen sc1\ns_mov_b64 exec, -1")
    A("s_cmp_eq_u32 s7, 1\ns_cbranch_scc1 L_qpoll\ns_branch L_qsum")
    A.label("L_qok")
    A("v_cmp_ne_u32 vcc, s67, v112\ns_cmp_eq_u64 vcc, 0\ns_cselect_b32 s43, 2, 1\ns_cbranch_scc1 L_qsum")
    A("s_cmp_lg_u32 s7, 0\ns_cbranch_scc1 L_qsum\ns_mov_b32 s7, 2\ns_branch L_qrep")
    A.label("L_qsum")
    if debug: A("s_mov_b32 s84, s75")
    for u in range(2):
        for e in range(4):
            r = 80 + u * 4 + e
            A(f"v_add_f32 v{r}, v{r}, v{r+8}\nv_add_f32 v{r+16}, v{r+16}, v{r+24}")
    for r in range(80, 88): A(f"v_add_f32 v{r}, v{r}, v{r+16}")
    for i in range(4): A(f"v_cvt_pk_bf16_f32 v{8+i}, v{80+2*i}, v{81+2*i}")
    A("v_lshlrev_b32 v7, 3, v1")
    A(f"ds_write_b64 v7, v[8:9] offset:{L_QF}\nds_write_b64 v7, v[10:11] offset:{L_QF+512}")
    A(f"v_mov_b32 v7, {L_FLAG}\nv_mov_b32 v12, s43\nds_write_b32 v7, v12")
    stamp(3)
    A("s_branch L_sphase")
    A.label("L_codeend")
    A('.section .rodata,"a"\n.p2align 6')
    A(f".amdhsa_kernel {NAME}_kernel\n.amdhsa_next_free_vgpr 128\n.amdhsa_next_free_sgpr 102\n.amdhsa_accum_offset 128")
    A(".amdhsa_group_segment_fixed_size 0\n.amdhsa_kernarg_size 104\n.amdhsa_user_sgpr_count 2\n.amdhsa_user_sgpr_kernarg_segment_ptr 1\n.amdhsa_system_sgpr_workgroup_id_x 1\n.end_amdhsa_kernel")
    txt = A.finish()
    if o["stnt"]:
        txt = "\n".join((l + " nt" if "buffer_store_dwordx4" in l and "sc1" not in l and "s73 offen offset" not in l else l) for l in txt.split("\n"))
    return txt

if __name__ == "__main__":
    name = sys.argv[1] if len(sys.argv) > 1 else "k18"
    opts = eval(sys.argv[2]) if len(sys.argv) > 2 else {}
    open(name + ".s", "w").write(gen(False, opts))
    open(name + "d.s", "w").write(gen(True, opts))
```
